```python
import torch

def _softmax(x, axis=-1):
    return torch.softmax(x, dim=axis)

def _gelu(x):
    return torch.nn.functional.gelu(x, approximate='tanh')

def _silu(x):
    return torch.nn.functional.silu(x)

def _sigmoid(x):
    return torch.sigmoid(x)

def _layernorm(x, axis=-1, eps=1e-05):
    m = x.mean(dim=axis, keepdim=True)
    v = x.var(dim=axis, keepdim=True, unbiased=False)
    return (x - m) / torch.sqrt(v + eps)

def _scatter_add(tgt, idx, src, axis=0):
    return tgt.clone().index_add_(axis, idx, src)

def _segment_sum(src, seg, n):
    out = torch.zeros((n,) + src.shape[1:], dtype=src.dtype)
    return out.index_add_(0, seg, src)

def _pad(x, pw):
    flat = tuple((v for pair in reversed(pw) for v in pair))
    return torch.nn.functional.pad(x, flat)
kernel_name = 'standalone__tree_speculative_verify_tree_attention_over_candidate_token_tree__sampling'

def setup_inputs():

    _w = lambda a: (lambda t: t.to(torch.bfloat16) if t.is_floating_point() else t)(torch.as_tensor(a))
    B, Hq, Hkv, T, C, D = (8, 32, 32, 16, 4096, 128)
    tree_mask = torch.zeros((B, T, T), dtype=float)
    for b in range(B):
        parent = torch.zeros(T, dtype=torch.int64)
        for i in range(1, T):
            parent[i] = int(torch.randint(0, i, (1,)).item())
        for i in range(T):
            j = i
            tree_mask[b, i, j] = 1.0
            while j > 0:
                j = parent[j]
                tree_mask[b, i, j] = 1.0
    return {'q': _w((lambda *s: torch.randn(*s, dtype=torch.bfloat16) * 0.8)(B, Hq, T, D)), 'k_cache': _w((lambda *s: torch.randn(*s, dtype=torch.bfloat16) * 0.8)(B, Hkv, C, D)), 'v_cache': _w((lambda *s: torch.randn(*s, dtype=torch.bfloat16) * 0.05)(B, Hkv, C, D)), 'k_tree': _w((lambda *s: torch.randn(*s, dtype=torch.bfloat16) * 0.8)(B, Hkv, T, D)), 'v_tree': _w((lambda *s: torch.randn(*s, dtype=torch.bfloat16) * 0.05)(B, Hkv, T, D)), 'tree_mask': _w(tree_mask)}

def reference(q, k_cache, v_cache, k_tree, v_tree, tree_mask):
    B, Hq, T, D = q.shape
    Hkv, C = (k_cache.shape[1], k_cache.shape[2])
    rep = Hq // Hkv
    kc = (lambda x, n, axis: torch.repeat_interleave(x, n, dim=axis))(k_cache, rep, axis=1)
    vc = (lambda x, n, axis: torch.repeat_interleave(x, n, dim=axis))(v_cache, rep, axis=1)
    kt = (lambda x, n, axis: torch.repeat_interleave(x, n, dim=axis))(k_tree, rep, axis=1)
    vt = (lambda x, n, axis: torch.repeat_interleave(x, n, dim=axis))(v_tree, rep, axis=1)
    k = torch.concatenate([kc, kt], axis=2)
    v = torch.concatenate([vc, vt], axis=2)
    scale = D ** (-0.5)
    scores = torch.einsum('bhqd,bhkd->bhqk', q, k) * scale
    ctx_mask = torch.ones((B, 1, T, C), dtype=scores.dtype)
    tm = tree_mask[:, None, :, :].clone()
    full_mask = torch.concatenate([ctx_mask, tm], axis=-1)
    scores = scores + (1.0 - full_mask) * -1000000000.0
    p = _softmax(scores, axis=-1)
    return torch.einsum('bhqk,bhkd->bhqd', p, v)
```

```python
import argparse, struct, math

NAME = "standalone__tree_speculative_verify_tree_attention_over_candidate_token_tree__sampling"

HEADER = """; Kernarg layout for this problem (72 bytes, ptrs only, base s[0:1]):
"""

def f32bits(x):
    return struct.unpack("<I", struct.pack("<f", x))[0]

def gen(a):
    NW = a.nw
    DEPTH = a.depth
    NBLK = 128 // NW
    assert NBLK % DEPTH == 0
    cache = a.cache
    L = []
    e = L.append

    sQ, sKC, sVC, sKT, sVT, sMK, sOUT = 4, 6, 8, 10, 12, 14, 16
    SRD_K, SRD_V, SRD_Q, SRD_X, SRD_Y = 20, 24, 28, 32, 36
    sW = 40
    sOFF0, sOFF1 = 41, 42
    sCNT = 43
    sC = 44
    sSELLO, sSELHI = 45, 46
    sT0, sT1 = 47, 48
    sBIG = 49
    SRD_Z = 52
    vTID = 0
    vKOFF, vVOFF = 1, 2
    vM, vL, vA, vB, vAL = 3, 4, 5, 6, 7
    vS = 8
    vP = 16
    vQ = 20
    vO = 36
    vVT = 68
    vKB = 100
    vVB = vKB + 32 * DEPTH
    NV = vVB + 32 * DEPTH

    def r(base, n):
        return f"v[{base}:{base+n-1}]"
    def sr(base, n):
        return f"s[{base}:{base+n-1}]"

    OBASE = NW * 16 * 8
    OSTR = 528
    OW = 16 * OSTR
    LDS = OBASE + NW * OW

    e(HEADER.rstrip())
    e(f"; @launch grid=(256,1,1) block=({NW*64},1,1) lds={LDS}")
    e('.amdgcn_target "amdgcn-amd-amdhsa--gfx950"')
    e(".text")
    e(f".globl {NAME}_kernel")
    e(".p2align 8")
    e(f".type {NAME}_kernel,@function")
    e(f"{NAME}_kernel:")
    e("    s_cmp_ge_u32 s2, 256")
    e("    s_cbranch_scc1 L_end")
    if a.stamp:
        e("    s_memrealtime s[56:57]")
    e("    s_load_dwordx16 s[4:19], s[0:1], 0")
    if a.reps > 1:
        e(f"    s_mov_b32 s50, {a.reps}")
        e("L_rep:")
    e(f"    v_lshrrev_b32 v{vA}, 6, v0")
    e(f"    v_and_b32 v{vB}, 63, v0")
    e(f"    v_readfirstlane_b32 s{sW}, v{vA}")
    e(f"    v_lshlrev_b32 v{vVOFF}, 4, v{vB}")
    e(f"    v_and_b32 v{vM}, 3, v{vB}")
    e(f"    v_lshlrev_b32 v{vM}, 10, v{vM}")
    e(f"    v_bfe_u32 v{vL}, v{vB}, 2, 2")
    e(f"    v_lshlrev_b32 v{vL}, 8, v{vL}")
    e(f"    v_add_u32 v{vKOFF}, v{vM}, v{vL}")
    e(f"    v_lshrrev_b32 v{vM}, 4, v{vB}")
    e(f"    v_lshlrev_b32 v{vM}, 4, v{vM}")
    e(f"    v_add_u32 v{vKOFF}, v{vKOFF}, v{vM}")
    e(f"    v_and_b32 v{vAL}, 15, v{vB}")
    e(f"    v_lshlrev_b32 v{vAL}, 8, v{vAL}")
    e(f"    v_add_u32 v{vAL}, v{vAL}, v{vM}")
    e(f"    s_lshl_b32 s{sT0}, s2, 20")
    e(f"    s_lshl_b32 s{sT1}, s2, 12")
    if a.order == "interleave":
        e(f"    s_lshl_b32 s{sOFF0}, s{sW}, 13")
        STEP = NW * 8192
        NREC = 1 << 20
    else:
        e(f"    s_mul_i32 s{sOFF0}, s{sW}, {NBLK*8192}")
        e(f"    s_add_u32 s{sT0}, s{sT0}, s{sOFF0}")
        e(f"    s_mov_b32 s{sOFF0}, 0")
        STEP = 8192
        NREC = NBLK * 8192
    e(f"    s_add_u32 s{sOFF1}, s{sOFF0}, 4096")
    e(f"    s_mov_b32 s{SRD_K+2}, {NREC}")
    e(f"    s_mov_b32 s{SRD_K+3}, 0x00020000")
    e(f"    s_mov_b32 s{SRD_V+2}, {NREC}")
    e(f"    s_mov_b32 s{SRD_V+3}, 0x00020000")
    e(f"    s_mov_b32 s{SRD_Q+2}, 4096")
    e(f"    s_mov_b32 s{SRD_Q+3}, 0x00020000")
    e("    s_waitcnt lgkmcnt(0)")
    e(f"    s_add_u32 s{SRD_K}, s{sKC}, s{sT0}")
    e(f"    s_addc_u32 s{SRD_K+1}, s{sKC+1}, 0")
    e(f"    s_add_u32 s{SRD_V}, s{sVC}, s{sT0}")
    e(f"    s_addc_u32 s{SRD_V+1}, s{sVC+1}, 0")
    e(f"    s_add_u32 s{SRD_Q}, s{sQ}, s{sT1}")
    e(f"    s_addc_u32 s{SRD_Q+1}, s{sQ+1}, 0")

    def k_loads(b):
        for t in range(2):
            for m in range(4):
                so = sOFF0 if t == 0 else sOFF1
                e(f"    buffer_load_dwordx4 {r(vKB + 32*b + 16*t + 4*m, 4)}, v{vKOFF}, {sr(SRD_K,4)}, s{so} offen offset:{64*m}{a.kcache}")
    def v_loads(b):
        for j in range(8):
            so = sOFF0 if j < 4 else sOFF1
            e(f"    buffer_load_dwordx4 {r(vVB + 32*b + 4*j, 4)}, v{vVOFF}, {sr(SRD_V,4)}, s{so} offen offset:{1024*(j&3)}{a.vcache}")
    def advance():
        e(f"    s_add_u32 s{sOFF0}, s{sOFF0}, {STEP}")
        e(f"    s_add_u32 s{sOFF1}, s{sOFF1}, {STEP}")

    for m in range(4):
        e(f"    buffer_load_dwordx4 {r(vQ+4*m,4)}, v{vAL}, {sr(SRD_Q,4)}, 0 offen offset:{64*m}")
    c = (128 ** -0.5) * math.log2(math.e)
    e(f"    s_mov_b32 s{sC}, {f32bits(c):#x}")
    e(f"    s_mov_b32 s{sSELLO}, 0x05040100")
    e(f"    s_mov_b32 s{sSELHI}, 0x07060302")
    e(f"    s_mov_b32 s{sCNT}, {NBLK // DEPTH}")
    TW = NW - 1
    e(f"    s_cmp_lg_u32 s{sW}, {TW}")
    e("    s_cbranch_scc1 L_notree_ld")
    for (srd, ptr, off, nrec) in ((SRD_X, sKT, sT1, 4096), (SRD_Y, sVT, sT1, 4096)):
        e(f"    s_add_u32 s{srd}, s{ptr}, s{off}")
        e(f"    s_addc_u32 s{srd+1}, s{ptr+1}, 0")
        e(f"    s_mov_b32 s{srd+2}, {nrec}")
        e(f"    s_mov_b32 s{srd+3}, 0x00020000")
    e(f"    s_lshr_b32 s{sT0}, s2, 5")
    e(f"    s_lshl_b32 s{sT0}, s{sT0}, 9")
    e(f"    s_add_u32 s{SRD_Z}, s{sMK}, s{sT0}")
    e(f"    s_addc_u32 s{SRD_Z+1}, s{sMK+1}, 0")
    e(f"    s_mov_b32 s{SRD_Z+2}, 512")
    e(f"    s_mov_b32 s{SRD_Z+3}, 0x00020000")
    for m in range(4):
        e(f"    buffer_load_dwordx4 {r(vVT+4*m,4)}, v{vKOFF}, {sr(SRD_X,4)}, 0 offen offset:{64*m}")
    for j in range(4):
        e(f"    buffer_load_dwordx4 {r(vVT+16+4*j,4)}, v{vVOFF}, {sr(SRD_Y,4)}, 0 offen offset:{1024*j}")
    e(f"    v_and_b32 v{vA}, 15, v{vB}")
    e(f"    v_lshlrev_b32 v{vA}, 5, v{vA}")
    e(f"    v_lshrrev_b32 v{vL}, 4, v{vB}")
    e(f"    v_lshl_add_u32 v{vA}, v{vL}, 1, v{vA}")
    for rr in range(4):
        e(f"    buffer_load_ushort v{vP+rr}, v{vA}, {sr(SRD_Z,4)}, 0 offen offset:{8*rr}")
    e("L_notree_ld:")
    for b in range(DEPTH):
        k_loads(b)
        v_loads(b)
        advance()
    e(f"    v_mov_b32 v{vM}, 0xff800000")
    e(f"    v_mov_b32 v{vL}, 0")
    for i in range(32):
        e(f"    v_mov_b32 v{vO+i}, 0")

    def xlane_reduce(op, va, vb):
        e(f"    v_mov_b32 v{vb}, v{va}")
        e("    s_nop 1")
        e(f"    v_permlane32_swap_b32 v{va}, v{vb}")
        e(f"    {op} v{va}, v{va}, v{vb}")
        e(f"    v_mov_b32 v{vb}, v{va}")
        e("    s_nop 1")
        e(f"    v_permlane16_swap_b32 v{va}, v{vb}")
        e(f"    {op} v{va}, v{va}, v{vb}")

    e(f"    s_cmp_lg_u32 s{sW}, {TW}")
    e("    s_cbranch_scc1 L_loop")
    e(f"    s_waitcnt vmcnt({16*DEPTH})")
    for m in range(4):
        cc = "0" if m == 0 else r(vS, 4)
        e(f"    v_mfma_f32_16x16x32_bf16 {r(vS,4)}, {r(vVT+4*m,4)}, {r(vQ+4*m,4)}, {cc}")
    big = 1e9 * math.log2(math.e)
    e(f"    s_mov_b32 s{sBIG}, {f32bits(big):#x}")
    for rr in range(4):
        e(f"    v_lshlrev_b32 v{vP+rr}, 16, v{vP+rr}")
    for rr in range(4):
        e(f"    v_fma_f32 v{vP+rr}, v{vP+rr}, s{sBIG}, -s{sBIG}")
    e("    s_nop 1")
    for rr in range(4):
        e(f"    v_fma_f32 v{vS+rr}, v{vS+rr}, s{sC}, v{vP+rr}")
    e(f"    v_max3_f32 v{vA}, v{vS}, v{vS+1}, v{vS+2}")
    e(f"    v_max_f32 v{vA}, v{vA}, v{vS+3}")
    xlane_reduce("v_max_f32", vA, vB)
    e(f"    v_mov_b32 v{vM}, v{vA}")
    for rr in range(4):
        e(f"    v_sub_f32 v{vS+rr}, v{vS+rr}, v{vM}")
    for rr in range(4):
        e(f"    v_exp_f32 v{vS+rr}, v{vS+rr}")
    e("    s_nop 0")
    e(f"    v_add_f32 v{vL}, v{vS}, v{vS+1}")
    e(f"    v_add_f32 v{vA}, v{vS+2}, v{vS+3}")
    e(f"    v_add_f32 v{vL}, v{vL}, v{vA}")
    e(f"    v_cvt_pk_bf16_f32 v{vP}, v{vS}, v{vS+1}")
    e(f"    v_cvt_pk_bf16_f32 v{vP+1}, v{vS+2}, v{vS+3}")
    for k in range(4):
        for h in range(2):
            jd = 2*k + h
            sel = sSELLO if h == 0 else sSELHI
            for p in range(2):
                e(f"    v_perm_b32 v{vVT+2*jd+p}, v{vVT+16+4*(2*p+1)+k}, v{vVT+16+4*(2*p)+k}, s{sel}")
    e("    s_nop 1")
    for jd in range(8):
        e(f"    v_mfma_f32_16x16x16_bf16 {r(vO+4*jd,4)}, {r(vVT+2*jd,2)}, {r(vP,2)}, {r(vO+4*jd,4)}")

    WAIT = 16 * DEPTH - 8
    if a.stamp:
        L[:] = [x.replace("s_cbranch_scc1 L_loop", "s_cbranch_scc1 L_pre") for x in L]
        e("L_pre:")
        e(f"    s_waitcnt vmcnt({WAIT})")
        e("    s_memrealtime s[58:59]")
        e("    s_waitcnt lgkmcnt(0)")
    e("L_loop:")
    for b in range(DEPTH):
        kb = vKB + 32*b
        vb = vVB + 32*b
        e(f"    s_waitcnt vmcnt({WAIT})")
        for m in range(4):
            for t in range(2):
                cc = "0" if m == 0 else r(vS+4*t, 4)
                e(f"    v_mfma_f32_16x16x32_bf16 {r(vS+4*t,4)}, {r(kb+16*t+4*m,4)}, {r(vQ+4*m,4)}, {cc}")
        k_loads(b)
        e(f"    v_max3_f32 v{vA}, v{vS}, v{vS+1}, v{vS+2}")
        e(f"    v_max3_f32 v{vB}, v{vS+3}, v{vS+4}, v{vS+5}")
        e(f"    v_max3_f32 v{vA}, v{vA}, v{vS+6}, v{vS+7}")
        e(f"    v_max_f32 v{vA}, v{vA}, v{vB}")
        xlane_reduce("v_max_f32", vA, vB)
        e(f"    v_mul_f32 v{vA}, s{sC}, v{vA}")
        e(f"    v_max_f32 v{vA}, v{vA}, v{vM}")
        e(f"    v_sub_f32 v{vAL}, v{vM}, v{vA}")
        e(f"    v_mov_b32 v{vM}, v{vA}")
        e(f"    v_exp_f32 v{vAL}, v{vAL}")
        for i in range(8):
            e(f"    v_fma_f32 v{vS+i}, v{vS+i}, s{sC}, -v{vM}")
        for i in range(8):
            e(f"    v_exp_f32 v{vS+i}, v{vS+i}")
        for i in range(32):
            e(f"    v_mul_f32 v{vO+i}, v{vO+i}, v{vAL}")
        e(f"    v_add_f32 v{vA}, v{vS}, v{vS+1}")
        e(f"    v_add_f32 v{vB}, v{vS+2}, v{vS+3}")
        e(f"    v_fma_f32 v{vL}, v{vL}, v{vAL}, v{vA}")
        e(f"    v_add_f32 v{vA}, v{vS+4}, v{vS+5}")
        e(f"    v_add_f32 v{vL}, v{vL}, v{vB}")
        e(f"    v_add_f32 v{vB}, v{vS+6}, v{vS+7}")
        e(f"    v_add_f32 v{vL}, v{vL}, v{vA}")
        for p in range(4):
            e(f"    v_cvt_pk_bf16_f32 v{vP+p}, v{vS+2*p}, v{vS+2*p+1}")
        e(f"    v_add_f32 v{vL}, v{vL}, v{vB}")
        e(f"    s_waitcnt vmcnt({WAIT})")
        for k in range(4):
            for h in range(2):
                jd = 2*k + h
                sel = sSELLO if h == 0 else sSELHI
                for p in range(4):
                    e(f"    v_perm_b32 v{vVT+4*jd+p}, v{vb+4*(2*p+1)+k}, v{vb+4*(2*p)+k}, s{sel}")
        v_loads(b)
        advance()
        for jd in range(8):
            e(f"    v_mfma_f32_16x16x32_bf16 {r(vO+4*jd,4)}, {r(vVT+4*jd,4)}, {r(vP,4)}, {r(vO+4*jd,4)}")
    e(f"    s_sub_u32 s{sCNT}, s{sCNT}, 1")
    e(f"    s_cmp_lg_u32 s{sCNT}, 0")
    e("    s_cbranch_scc1 L_loop")

    if a.reps > 1:
        e("    s_waitcnt vmcnt(0)")
        e("    s_nop 7")
        e("    s_sub_u32 s50, s50, 1")
        e("    s_cmp_lg_u32 s50, 0")
        e("    s_cbranch_scc1 L_rep")
    if a.stamp:
        e("    s_memrealtime s[60:61]")
        e("    s_waitcnt lgkmcnt(0)")
    xlane_reduce("v_add_f32", vL, vB)
    e(f"    v_and_b32 v{vA}, 15, v0")
    e(f"    v_mul_u32_u24 v{vB}, {NW*8}, v{vA}")
    e(f"    s_lshl_b32 s{sT0}, s{sW}, 3")
    e(f"    v_add_u32 v{vB}, s{sT0}, v{vB}")
    assert vL == vM + 1 and False or True
    e(f"    ds_write2_b32 v{vB}, v{vM}, v{vL} offset0:0 offset1:1")
    e(f"    v_mul_u32_u24 v{vA}, {OSTR}, v{vA}")
    e(f"    v_bfe_u32 v{vB}, v0, 4, 2")
    e(f"    v_lshl_add_u32 v{vA}, v{vB}, 7, v{vA}")
    e(f"    s_mul_i32 s{sT0}, s{sW}, {OW}")
    e(f"    s_add_u32 s{sT0}, s{sT0}, {OBASE}")
    e(f"    v_add_u32 v{vA}, s{sT0}, v{vA}")
    for rr in range(4):
        for jp in range(4):
            jd = 2*jp
            e(f"    ds_write2_b32 v{vA}, v{vO+4*jd+rr}, v{vO+4*(jd+1)+rr} offset0:{8*rr+jd} offset1:{8*rr+jd+1}")
    e(f"    s_add_u32 s{SRD_X}, s{sOUT}, s{sT1}")
    e(f"    s_addc_u32 s{SRD_X+1}, s{sOUT+1}, 0")
    e(f"    s_mov_b32 s{SRD_X+2}, 4096")
    e(f"    s_mov_b32 s{SRD_X+3}, 0x00020000")
    e("    s_waitcnt lgkmcnt(0)")
    e("    s_barrier")
    EPT = 2048 // (NW * 64)
    TPQ = 128 // EPT
    sh = int(math.log2(TPQ))
    e(f"    v_lshrrev_b32 v{vA}, {sh}, v0")
    e(f"    v_and_b32 v{vB}, {TPQ-1}, v0")
    e(f"    v_mul_u32_u24 v{vAL}, {NW*8}, v{vA}")
    ST = vVT
    for i in range(NW // 2):
        e(f"    ds_read_b128 {r(ST+4*i,4)}, v{vAL} offset:{16*i}")
    e(f"    v_mul_u32_u24 v{vA}, {OSTR}, v{vA}")
    e(f"    v_lshl_add_u32 v{vA}, v{vB}, {int(math.log2(EPT*4))}, v{vA}")
    PB = vO
    for w in range(NW):
        for x in range(EPT // 4):
            e(f"    ds_read_b128 {r(PB+EPT*w+4*x,4)}, v{vA} offset:{OBASE + w*OW + 16*x}")
    e(f"    s_waitcnt lgkmcnt({min(15, NW*EPT//4)})")
    e(f"    v_max_f32 v{vM}, v{ST}, v{ST+2}")
    for w in range(2, NW, 2):
        e(f"    v_max3_f32 v{vM}, v{vM}, v{ST+2*w}, v{ST+2*w+2}")
    for w in range(NW):
        e(f"    v_sub_f32 v{ST+2*w}, v{ST+2*w}, v{vM}")
    for w in range(NW):
        e(f"    v_exp_f32 v{ST+2*w}, v{ST+2*w}")
    e("    s_nop 0")
    e(f"    v_mul_f32 v{vL}, v{ST}, v{ST+1}")
    for w in range(1, NW):
        e(f"    v_fma_f32 v{vL}, v{ST+2*w}, v{ST+2*w+1}, v{vL}")
    e(f"    v_rcp_f32 v{vL}, v{vL}")
    e("    s_waitcnt lgkmcnt(0)")
    for x in range(EPT):
        e(f"    v_mul_f32 v{vS+x}, v{PB+x}, v{ST}")
    for w in range(1, NW):
        for x in range(EPT):
            e(f"    v_fma_f32 v{vS+x}, v{PB+EPT*w+x}, v{ST+2*w}, v{vS+x}")
    for x in range(EPT):
        e(f"    v_mul_f32 v{vS+x}, v{vS+x}, v{vL}")
    for x in range(EPT // 2):
        e(f"    v_cvt_pk_bf16_f32 v{vP+x}, v{vS+2*x}, v{vS+2*x+1}")
    e(f"    v_lshlrev_b32 v{vA}, {int(math.log2(EPT*2))}, v0")
    if EPT == 4:
        e(f"    buffer_store_dwordx2 {r(vP,2)}, v{vA}, {sr(SRD_X,4)}, 0 offen")
    else:
        e(f"    buffer_store_dwordx4 {r(vP,4)}, v{vA}, {sr(SRD_X,4)}, 0 offen")
    if a.stamp:
        e("    s_waitcnt vmcnt(0)")
        e("    s_memrealtime s[62:63]")
        e(f"    s_mov_b32 s{SRD_Y}, s18")
        e(f"    s_mov_b32 s{SRD_Y+1}, s19")
        e(f"    s_mov_b32 s{SRD_Y+2}, 256")
        e(f"    s_mov_b32 s{SRD_Y+3}, 0x00020000")
        e("    s_waitcnt lgkmcnt(0)")
        e("    s_mov_b64 exec, 1")
        e(f"    v_mov_b32 v{vA}, 0")
        for i, sreg in enumerate((56, 58, 60, 62) if a.stamp & 1 else ()):
            e(f"    v_mov_b32 v{vB}, s{sreg}")
            e(f"    v_not_b32 v{vAL}, v{vB}")
            e(f"    buffer_atomic_umax v{vB}, v{vA}, {sr(SRD_Y,4)}, 0 offen offset:{8*i}")
            e(f"    buffer_atomic_umax v{vAL}, v{vA}, {sr(SRD_Y,4)}, 0 offen offset:{8*i+4}")
            e("    s_nop 1")
        if a.stamp > 1:
            e("    s_load_dwordx2 s[4:5], s[0:1], 64")
            e(f"    s_mul_i32 s{sT0}, s2, {NW}")
            e(f"    s_add_u32 s{sT0}, s{sT0}, s{sW}")
            e(f"    s_lshl_b32 s{sT0}, s{sT0}, 4")
            e("    s_waitcnt lgkmcnt(0)")
            e(f"    s_mov_b32 s{SRD_Y}, s4")
            e(f"    s_mov_b32 s{SRD_Y+1}, s5")
            e(f"    s_mov_b32 s{SRD_Y+2}, 0x100000")
            e(f"    s_mov_b32 s{SRD_Y+3}, 0x00020000")
            for i, sreg in enumerate((56, 58, 60, 62)):
                e(f"    v_mov_b32 v{vS+i}, s{sreg}")
            e(f"    v_mov_b32 v{vA}, s{sT0}")
            e(f"    buffer_store_dwordx4 {r(vS,4)}, v{vA}, {sr(SRD_Y,4)}, 0 offen")
    e("L_end:")
    e("    s_endpgm")
    e('.section .rodata,"a"')
    e(".p2align 6")
    e(f".amdhsa_kernel {NAME}_kernel")
    acc = (NV + 3) // 4 * 4
    e(f"  .amdhsa_next_free_vgpr {NV}")
    e("  .amdhsa_next_free_sgpr 64")
    e(f"  .amdhsa_accum_offset {min(acc,256)}")
    e("  .amdhsa_group_segment_fixed_size 0")
    e("  .amdhsa_kernarg_size 72")
    e("  .amdhsa_user_sgpr_count 2")
    e("  .amdhsa_user_sgpr_kernarg_segment_ptr 1")
    e("  .amdhsa_system_sgpr_workgroup_id_x 1")
    e(".end_amdhsa_kernel")
    return "\n".join(L) + "\n"

if __name__ == "__main__":
    ap = argparse.ArgumentParser()
    ap.add_argument("--nw", type=int, default=8)
    ap.add_argument("--depth", type=int, default=2)
    ap.add_argument("--order", default="interleave")
    ap.add_argument("--cache", default="")
    ap.add_argument("--reps", type=int, default=1)
    ap.add_argument("--stamp", type=int, default=0)
    ap.add_argument("--kcache", default=None)
    ap.add_argument("--vcache", default=None)
    ap.add_argument("-o", default="/dev/stdout")
    a = ap.parse_args()
    if a.kcache is None: a.kcache = a.cache
    if a.vcache is None: a.vcache = a.cache
    fix = lambda c: (" " + c.replace(",", " ")) if c else ""
    a.kcache, a.vcache = fix(a.kcache), fix(a.vcache)
    open(a.o, "w").write(gen(a))
```

```python
import argparse, struct, math
from gen import NAME, HEADER, f32bits

def gen(a):
    NW, NP, NBLK = 4, 5, 32
    R = a.r
    RS = max(R, a.r2, a.rs)
    assert 5 <= RS <= 11
    cache = " nt"
    L = []; e = L.append
    sQ, sKC, sVC, sKT, sVT, sMK, sOUT = 4, 6, 8, 10, 12, 14, 16
    SRD, sVB, SRD_Q, SRD_O, SRD_M = 20, 24, 28, 32, 36
    sW, sO0, sO1, sCNT, sC, sREM, sIDX, sT0, sT1, sNB, sLW, sTOG = 40, 41, 42, 43, 44, 45, 46, 47, 48, 49, 50, 51
    vSRC, vKR, vM, vL, vA, vB, vAL, vWA, vRA, vSA, vVR, vP, vF = 1, 2, 4, 5, 6, 7, 8, 9, 10, 11, 12, 16, 20
    vC4, vG4, vTR = 26, 27, 28
    vO, vVT, vST = 32, 64, 96
    vQ, vKF, vS, vBI = 32, 48, 64, 72
    NV = 256
    r = lambda b, n: f"v[{b}:{b+n-1}]"
    sr = lambda b, n: f"s[{b}:{b+n-1}]"
    SL = 1152
    HALF = 8 * SL
    TOG = 65536
    STB = NP * HALF
    OBASE = TOG + NP * HALF
    OSTR, OW = 528, 16 * 528
    LDS = OBASE + NP * OW
    STEP = NW * 8192
    S0 = RS + 3
    lab = [0]

    e(HEADER.rstrip())
    e(f"; @launch grid=(256,1,1) block=(320,1,1) lds={LDS}")
    e('.amdgcn_target "amdgcn-amd-amdhsa--gfx950"')
    e(".text")
    e(f".globl {NAME}_kernel")
    e(".p2align 8")
    e(f".type {NAME}_kernel,@function")
    e(f"{NAME}_kernel:")
    if a.stamp or a.dbg: e("    s_memrealtime s[56:57]")
    e("    s_load_dwordx16 s[4:19], s[0:1], 0")
    e(f"    v_lshrrev_b32 v{vA}, 6, v0")
    e(f"    v_and_b32 v{vC4}, 15, v0")
    e(f"    v_readfirstlane_b32 s{sW}, v{vA}")
    e(f"    v_bfe_u32 v{vG4}, v0, 4, 2")
    e("    s_cmp_ge_u32 s2, 256")
    e("    s_cbranch_scc1 L_end")
    e(f"    v_lshlrev_b32 v{vA}, 1, v{vG4}")
    e(f"    v_xor_b32 v{vA}, v{vA}, v{vC4}")
    e(f"    v_lshlrev_b32 v{vA}, 4, v{vA}")
    e(f"    v_lshl_add_u32 v{vSRC}, v{vG4}, 8, v{vA}")
    e(f"    s_lshl_b32 s{sT0}, s2, 20")
    e(f"    s_lshl_b32 s{sO0}, s{sW}, 13")
    e(f"    s_lshl_b32 s{sT1}, s2, 12")
    e(f"    s_add_u32 s{sT0}, s{sT0}, s{sO0}")
    e(f"    s_sub_u32 s{SRD+2}, 0x100000, s{sO0}")
    e(f"    s_mul_i32 s{sLW}, s{sW}, {HALF}")
    e(f"    s_mov_b32 s{SRD+3}, 0x00020000")
    e(f"    s_mov_b32 s{sO0}, 0")
    e(f"    s_mov_b32 m0, s{sLW}")
    e(f"    s_cmp_eq_u32 s{sW}, {NW}")
    e(f"    s_cselect_b32 s{sT0}, s{sT1}, s{sT0}")
    e(f"    s_cselect_b32 s{SRD+2}, 4096, s{SRD+2}")
    e(f"    s_cselect_b32 s{sNB}, 1, {NBLK}")
    e("    s_waitcnt lgkmcnt(0)")
    e(f"    s_cselect_b64 {sr(sKC,2)}, {sr(sKT,2)}, {sr(sKC,2)}")
    e(f"    s_cselect_b64 {sr(sVC,2)}, {sr(sVT,2)}, {sr(sVC,2)}")
    e(f"    s_add_u32 s{SRD}, s{sKC}, s{sT0}")
    e(f"    s_addc_u32 s{SRD+1}, s{sKC+1}, 0")

    def pre_load(s, m0done=False):
        j = s % 8
        if not m0done:
            e(f"    s_add_u32 m0, s{sLW}, {j*SL - 1024*(j&3)}")
    def load(s, switch):
        j = s % 8
        so = sO0 if j < 4 else sO1
        e(f"    buffer_load_dwordx4 v{vSRC}, {sr(SRD,4)}, s{so} offen offset:{1024*(j&3)}{cache} lds")
        if j == 3:
            e(f"    s_add_u32 s{sO1}, s{sO0}, 4096")
        if j == 7:
            e(f"    s_add_u32 s{sO0}, s{sO0}, {STEP}")
            e(f"    s_xor_b32 s{sLW}, s{sLW}, {TOG}")
            if switch:
                e(f"    s_sub_u32 s{sREM}, s{sREM}, 1")
                e(f"    s_cmp_eq_u32 s{sREM}, 0")
                e(f"    s_cselect_b64 {sr(SRD,2)}, {sr(sVB,2)}, {sr(SRD,2)}")
                e(f"    s_cselect_b32 s{sO0}, 0, s{sO0}")
    def wait(boost):
        if boost and RS > R:
            lab[0] += 1
            e(f"    s_cbranch_vccnz L_b{lab[0]}")
            e(f"    s_waitcnt vmcnt({R-1})")
            e(f"L_b{lab[0]}:")
            e(f"    s_waitcnt vmcnt({a.r2-1})")
        else:
            e(f"    s_waitcnt vmcnt({R-1})")

    R0 = min(a.r0 or R, S0)
    QAT = 4
    def setup_rest():
        e(f"    s_add_u32 s{sVB}, s{sVC}, s{sT0}")
        e(f"    s_addc_u32 s{sVB+1}, s{sVC+1}, 0")
        e(f"    s_mov_b32 s{sREM}, s{sNB}")
        e(f"    s_add_u32 s{SRD_Q}, s{sQ}, s{sT1}")
        e(f"    s_addc_u32 s{SRD_Q+1}, s{sQ+1}, 0")
        e(f"    s_mov_b32 s{SRD_Q+2}, 4096")
        e(f"    s_mov_b32 s{SRD_Q+3}, 0x00020000")
        e(f"    v_lshlrev_b32 v{vAL}, 8, v{vC4}")
        e(f"    v_lshl_add_u32 v{vAL}, v{vG4}, 4, v{vAL}")
        for m in range(4):
            e(f"    buffer_load_dwordx4 {r(vQ+4*m,4)}, v{vAL}, {sr(SRD_Q,4)}, 0 offen offset:{64*m}{a.qc}")
    for s in range(R0):
        if s == QAT: setup_rest()
        if s > 0:
            pre_load(s)
            e("    s_nop 0")
        load(s, True)
    e(f"    s_mul_i32 s{sT0}, s{sW}, {HALF}")
    e(f"    v_lshrrev_b32 v{vA}, 2, v{vC4}")
    e(f"    v_mul_u32_u24 v{vKR}, {SL}, v{vA}")
    e(f"    v_and_b32 v{vB}, 3, v{vC4}")
    e(f"    v_lshl_add_u32 v{vKR}, v{vB}, 8, v{vKR}")
    e(f"    v_lshlrev_b32 v{vB}, 1, v{vB}")
    e(f"    v_xor_b32 v{vB}, v{vB}, v{vG4}")
    e(f"    v_lshl_add_u32 v{vKR}, v{vB}, 4, v{vKR}")
    e(f"    v_add_u32 v{vKR}, s{sT0}, v{vKR}")
    e(f"    v_xor_b32 v{vB}, 4, v{vB}")
    e(f"    v_lshlrev_b32 v{vB}, 4, v{vB}")
    e(f"    v_and_b32 v{vKR+1}, 0xffffff8f, v{vKR}")
    e(f"    v_or_b32 v{vKR+1}, v{vKR+1}, v{vB}")
    e(f"    v_mul_u32_u24 v{vVR}, {SL}, v{vG4}")
    e(f"    v_lshl_add_u32 v{vVR}, v{vA}, 8, v{vVR}")
    e(f"    v_and_b32 v{vB}, 3, v{vC4}")
    e(f"    v_lshl_add_u32 v{vVR}, v{vB}, 3, v{vVR}")
    e(f"    v_lshl_add_u32 v{vVR}, v{vA}, 5, v{vVR}")
    e(f"    v_add_u32 v{vVR}, s{sT0}, v{vVR}")
    e(f"    s_and_b32 s{sTOG}, s{sNB}, 1")
    e(f"    s_lshl_b32 s{sTOG}, s{sTOG}, 16")
    e(f"    v_xor_b32 v{vVR}, s{sTOG}, v{vVR}")
    for k in range(1, 4):
        e(f"    v_xor_b32 v{vVR+k}, {32*k}, v{vVR}")
    c = (128 ** -0.5) * math.log2(math.e)
    e(f"    s_mov_b32 s{sC}, {f32bits(c):#x}")
    e(f"    s_lshl_b32 s{sT0}, s{sW}, 3")
    e(f"    s_add_u32 s{sT0}, s{sT0}, {STB}")
    e(f"    v_lshl_add_u32 v{vSA}, v{vC4}, 6, s{sT0}")
    e(f"    s_mul_i32 s{sT0}, s{sW}, {OW}")
    e(f"    s_add_u32 s{sT0}, s{sT0}, {OBASE}")
    e(f"    v_mul_u32_u24 v{vWA}, {OSTR}, v{vC4}")
    e(f"    v_lshl_add_u32 v{vWA}, v{vG4}, 4, v{vWA}")
    e(f"    v_add_u32 v{vWA}, s{sT0}, v{vWA}")
    e(f"    v_lshrrev_b32 v{vA}, 4, v0")
    e(f"    v_mul_u32_u24 v{vRA}, {OSTR}, v{vA}")
    e(f"    v_lshl_add_u32 v{vRA}, v{vC4}, 5, v{vRA}")
    e(f"    v_add_u32 v{vRA}, {OBASE}, v{vRA}")
    e(f"    s_add_u32 s{SRD_O}, s{sOUT}, s{sT1}")
    e(f"    s_addc_u32 s{SRD_O+1}, s{sOUT+1}, 0")
    e(f"    s_mov_b32 s{SRD_O+2}, 4096")
    e(f"    s_mov_b32 s{SRD_O+3}, 0x00020000")
    e(f"    v_mov_b32 v{vM}, 0xff800000")
    e(f"    v_mov_b32 v{vL}, 0")
    for i in range(8): e(f"    v_mov_b32 v{vBI+i}, 0")
    e(f"    s_mov_b32 s{sIDX}, 0")
    e(f"    s_mov_b32 s{sCNT}, s{sNB}")
    e("    s_mov_b64 vcc, 0")
    e(f"    s_cmp_lg_u32 s{sW}, {NW}")
    e("    s_cbranch_scc1 L_nomask")
    e(f"    s_lshr_b32 s{sT0}, s2, 5")
    e(f"    s_lshl_b32 s{sT0}, s{sT0}, 9")
    e(f"    s_add_u32 s{SRD_M}, s{sMK}, s{sT0}")
    e(f"    s_addc_u32 s{SRD_M+1}, s{sMK+1}, 0")
    e(f"    s_mov_b32 s{SRD_M+2}, 512")
    e(f"    s_mov_b32 s{SRD_M+3}, 0x00020000")
    e(f"    v_lshlrev_b32 v{vA}, 5, v{vC4}")
    e(f"    v_lshl_add_u32 v{vA}, v{vG4}, 3, v{vA}")
    e(f"    buffer_load_dwordx2 {r(vP,2)}, v{vA}, {sr(SRD_M,4)}, 0 offen")
    big = 1e9 * math.sqrt(128.0)
    e(f"    s_mov_b32 s{sT0}, {f32bits(big):#x}")
    for i in range(4): e(f"    v_mov_b32 v{vBI+4+i}, 0xff800000")
    e("    s_waitcnt vmcnt(0)")
    e(f"    v_lshlrev_b32 v{vBI}, 16, v{vP}")
    e(f"    v_and_b32 v{vBI+1}, 0xffff0000, v{vP}")
    e(f"    v_lshlrev_b32 v{vBI+2}, 16, v{vP+1}")
    e(f"    v_and_b32 v{vBI+3}, 0xffff0000, v{vP+1}")
    for i in range(4): e(f"    v_fma_f32 v{vBI+i}, v{vBI+i}, s{sT0}, -s{sT0}")
    e("L_nomask:")

    def xlane_reduce(op, va, vb):
        e(f"    v_mov_b32 v{vb}, v{va}")
        e("    s_nop 1")
        e(f"    v_permlane32_swap_b32 v{va}, v{vb}")
        e(f"    {op} v{va}, v{va}, v{vb}")
        e(f"    v_mov_b32 v{vb}, v{va}")
        e("    s_nop 1")
        e(f"    v_permlane16_swap_b32 v{va}, v{vb}")
        e(f"    {op} v{va}, v{va}, v{vb}")

    for s in range(R0, S0):
        pre_load(s)
        extra = 4 if s - R < QAT else 0
        e(f"    s_waitcnt vmcnt({R - 1 + extra})")
        load(s, True)

    def trace(lane):
        e("    s_memrealtime s[60:61]")
        e("    s_waitcnt lgkmcnt(0)")
        e(f"    v_writelane_b32 v{vTR}, s60, {lane}")
    def trace_dyn():
        e("    s_memrealtime s[60:61]")
        e("    s_lshr_b32 s62, s55, 1")
        e("    s_waitcnt lgkmcnt(0)")
        e("    s_mov_b32 m0, s62")
        e(f"    v_writelane_b32 v{vTR}, s60, m0")
        e("    s_add_u32 s55, s55, 1")
    if a.stamp:
        e(f"    v_mov_b32 v{vTR}, 0")
        e(f"    v_writelane_b32 v{vTR}, s56, 0")
        trace(1)
        e("    s_mov_b32 s55, 5")

    if a.dbg:
        e("    s_memrealtime s[58:59]")
        e("    s_waitcnt lgkmcnt(0)")
    def kread(t):
        for m in range(4):
            e(f"    ds_read_b128 {r(vKF+4*m,4)}, v{vKR+(m&1)} offset:{t*4*SL + 128*(m>>1)}")
        if t == 1:
            for k in range(2): e(f"    v_xor_b32 v{vKR+k}, {TOG}, v{vKR+k}")
    def qk(t):
        for m in range(4):
            e(f"    s_waitcnt lgkmcnt({3-m})")
            cc = r(vBI+4*t, 4) if m == 0 else r(vS+4*t, 4)
            e(f"    v_mfma_f32_16x16x32_bf16 {r(vS+4*t,4)}, {r(vKF+4*m,4)}, {r(vQ+4*m,4)}, {cc}")
    def sm1():
        e(f"    v_max3_f32 v{vA}, v{vS}, v{vS+1}, v{vS+2}")
        e("    s_nop 3")
        e(f"    v_max3_f32 v{vB}, v{vS+3}, v{vS+4}, v{vS+5}")
        e(f"    v_max3_f32 v{vA}, v{vA}, v{vS+6}, v{vS+7}")
        e(f"    v_max_f32 v{vA}, v{vA}, v{vB}")
        xlane_reduce("v_max_f32", vA, vB)
        e(f"    v_mul_f32 v{vA}, s{sC}, v{vA}")
        e(f"    v_max_f32 v{vA}, v{vA}, v{vM}")
        e(f"    v_sub_f32 v{vAL}, v{vM}, v{vA}")
        e(f"    v_mov_b32 v{vM}, v{vA}")
        e(f"    v_exp_f32 v{vAL}, v{vAL}")
    def sm2():
        for i in range(8): e(f"    v_fma_f32 v{vS+i}, v{vS+i}, s{sC}, -v{vM}")
        for i in range(8): e(f"    v_exp_f32 v{vS+i}, v{vS+i}")
        e(f"    v_add_f32 v{vA}, v{vS}, v{vS+1}")
        e(f"    v_add_f32 v{vB}, v{vS+2}, v{vS+3}")
        e(f"    v_fma_f32 v{vL}, v{vL}, v{vAL}, v{vA}")
        e(f"    v_add_f32 v{vA}, v{vS+4}, v{vS+5}")
        e(f"    v_add_f32 v{vL}, v{vL}, v{vB}")
        e(f"    v_add_f32 v{vB}, v{vS+6}, v{vS+7}")
        e(f"    v_add_f32 v{vL}, v{vL}, v{vA}")
        for p in range(4): e(f"    v_cvt_pk_bf16_f32 v{vP+p}, v{vS+2*p}, v{vS+2*p+1}")
        e(f"    v_add_f32 v{vL}, v{vL}, v{vB}")
        e(f"    s_set_gpr_idx_on s{sIDX}, gpr_idx(DST)")
        for p in range(4): e(f"    v_mov_b32 v{vST+p}, v{vP+p}")
        e(f"    v_mov_b32 v{vST+4}, v{vAL}")
        e("    s_set_gpr_idx_off")
        e(f"    s_add_u32 s{sIDX}, s{sIDX}, 5")
    t1 = {3: [lambda: kread(0)], 4: [lambda: qk(0)], 7: [lambda: kread(1)], 8: [lambda: qk(1)], 9: [sm1], 10: [sm2]}
    if a.align: e(f"    .p2align {a.align}")
    e("L_p1:")
    if a.stamp: trace_dyn()
    for s in range(S0, S0 + 8):
        pre_load(s)
        wait(False)
        load(s, True)
        for t in t1.get(s - RS, []): t()
    e(f"    s_sub_u32 s{sCNT}, s{sCNT}, 1")
    e(f"    s_cmp_lg_u32 s{sCNT}, 0")
    e("    s_cbranch_scc1 L_p1")

    xlane_reduce("v_add_f32", vL, vB)
    e(f"    ds_write_b64 v{vSA}, {r(vM,2)}")
    for i in range(32): e(f"    v_mov_b32 v{vO+i}, 0")
    e(f"    v_lshrrev_b32 v{vA}, 4, v0")
    e(f"    v_lshlrev_b32 v{vA}, 6, v{vA}")
    e(f"    s_mov_b32 s{sIDX}, 0")
    e(f"    s_mov_b32 s{sCNT}, s{sNB}")
    e(f"    s_cmp_eq_u32 s{sW}, {NW}")
    e("    s_cselect_b64 exec, 0, -1")
    e("    s_waitcnt lgkmcnt(0)")
    e("    s_cbranch_scc1 L_nobar1")
    e("    s_barrier")
    e("L_nobar1:")
    ST = vVT
    for i in range(3):
        e(f"    ds_read_b128 {r(ST+4*i,4)}, v{vA} offset:{STB + 16*i}")
    e("    s_waitcnt lgkmcnt(0)")
    e(f"    v_max3_f32 v{vA}, v{ST}, v{ST+2}, v{ST+4}")
    e(f"    v_max3_f32 v{vA}, v{vA}, v{ST+6}, v{ST+8}")
    for w in range(NP): e(f"    v_sub_f32 v{vF+w}, v{ST+2*w}, v{vA}")
    for w in range(NP): e(f"    v_exp_f32 v{vF+w}, v{vF+w}")
    e("    s_nop 0")
    e(f"    v_mul_f32 v{vB}, v{vF}, v{ST+1}")
    for w in range(1, NP): e(f"    v_fma_f32 v{vB}, v{vF+w}, v{ST+2*w+1}, v{vB}")
    e(f"    v_rcp_f32 v{vB}, v{vB}")
    e("    s_nop 0")
    for w in range(NP): e(f"    v_mul_f32 v{vF+w}, v{vF+w}, v{vB}")
    e("    s_mov_b64 exec, -1")

    def vread(t):
        for jd in range(8):
            e(f"    ds_read_b64_tr_b16 {r(vVT+4*jd+2*t,2)}, v{vVR+(jd&3)} offset:{t*4*SL + 128*(jd>>2)}")
        if t == 1:
            for k in range(4): e(f"    v_xor_b32 v{vVR+k}, {TOG}, v{vVR+k}")
    def pfetch():
        e(f"    s_set_gpr_idx_on s{sIDX}, gpr_idx(SRC0)")
        for p in range(4): e(f"    v_mov_b32 v{vP+p}, v{vST+p}")
        e(f"    v_mov_b32 v{vAL}, v{vST+4}")
        e("    s_set_gpr_idx_off")
        e(f"    s_add_u32 s{sIDX}, s{sIDX}, 5")
        e("    s_waitcnt lgkmcnt(0)")
    def resc(half):
        for i in range(16*half, 16*half+16): e(f"    v_mul_f32 v{vO+i}, v{vO+i}, v{vAL}")
    def pv():
        e(f"    s_sub_u32 s{sCNT}, s{sCNT}, 1")
        if RS > R:
            e(f"    s_cmp_le_u32 s{sCNT}, {a.n2}")
            e("    s_cselect_b64 vcc, -1, 0")
        e(f"    s_cmp_eq_u32 s{sCNT}, 0")
        for jd in range(8):
            e(f"    s_waitcnt lgkmcnt({7-jd})")
            e(f"    v_mfma_f32_16x16x32_bf16 {r(vO+4*jd,4)}, {r(vVT+4*jd,4)}, {r(vP,4)}, {r(vO+4*jd,4)}")
        e("    s_cbranch_scc1 L_epi")
    v1 = [lambda: vread(1)] + ([pv] if a.pvnow else [])
    t2 = {3: [lambda: vread(0)], 4: [pfetch], 5: [lambda: resc(0)], 6: [lambda: resc(1)], 7: v1}
    if not a.pvnow: t2[8] = [pv]
    if a.align: e(f"    .p2align {a.align}")
    e("L_p2:")
    if a.stamp: trace_dyn()
    for s in range(S0, S0 + 8):
        pre_load(s)
        wait(True)
        load(s, False)
        for t in t2.get(s - RS, []): t()
    e("    s_branch L_p2")

    e("L_epi:")
    if a.stamp: trace(35)
    e(f"    s_cmp_eq_u32 s{sW}, {NW}")
    e(f"    v_lshlrev_b32 v{vA}, 4, v0")
    for jd in range(8):
        if jd == 0: e("    s_nop 0")
        e(f"    ds_write_b128 v{vWA}, {r(vO+4*jd,4)} offset:{64*jd}")
    e("    s_cselect_b64 exec, 0, -1")
    e("    s_waitcnt lgkmcnt(0)")
    e("    s_cbranch_scc1 L_nobar2")
    e("    s_barrier")
    e("L_nobar2:")
    if a.stamp: trace(36)
    PB = vST
    for w in range(NP):
        for x in range(2):
            e(f"    ds_read_b128 {r(PB+8*w+4*x,4)}, v{vRA} offset:{w*OW + 16*x}")
    for w in range(NP):
        e(f"    s_waitcnt lgkmcnt({2*(NP-1-w)})")
        for x in range(8):
            if w == 0: e(f"    v_mul_f32 v{vVT+x}, v{PB+x}, v{vF}")
            else: e(f"    v_fma_f32 v{vVT+x}, v{PB+8*w+x}, v{vF+w}, v{vVT+x}")
    for x in range(4): e(f"    v_cvt_pk_bf16_f32 v{vP+x}, v{vVT+2*x}, v{vVT+2*x+1}")
    e("    s_cbranch_scc1 L_end")
    e(f"    buffer_store_dwordx4 {r(vP,4)}, v{vA}, {sr(SRD_O,4)}, 0 offen{a.stc}")
    if a.stamp:
        e("    s_waitcnt vmcnt(0)")
        trace(37)
        e("    s_load_dwordx2 s[4:5], s[0:1], 64")
        e(f"    s_lshl_b32 s{sT0}, s2, 10")
        e(f"    v_lshlrev_b32 v{vA}, 2, v0")
        e("    s_waitcnt lgkmcnt(0)")
        e(f"    s_mov_b32 s{SRD_M}, s4")
        e(f"    s_mov_b32 s{SRD_M+1}, s5")
        e(f"    s_mov_b32 s{SRD_M+2}, 0x100000")
        e(f"    s_mov_b32 s{SRD_M+3}, 0x00020000")
        e(f"    buffer_store_dword v{vTR}, v{vA}, {sr(SRD_M,4)}, s{sT0} offen")
    if a.dbg:
        e("    s_waitcnt vmcnt(0)")
        e("    s_memrealtime s[60:61]")
        e("    s_cmp_ge_u32 s2, 16")
        e("    s_cbranch_scc1 L_end")
        e(f"    s_cmp_lg_u32 s{sW}, 0")
        e("    s_cbranch_scc1 L_end")
        e("    s_waitcnt lgkmcnt(0)")
        e("    s_sub_u32 s60, s60, s56")
        e("    s_sub_u32 s58, s58, s56")
        e("    s_mul_i32 s58, s58, 100000")
        e("    s_add_u32 s60, s60, s58")
        e(f"    s_mov_b32 s{SRD_M}, s18")
        e(f"    s_mov_b32 s{SRD_M+1}, s19")
        e(f"    s_mov_b32 s{SRD_M+2}, 256")
        e(f"    s_mov_b32 s{SRD_M+3}, 0x00020000")
        e("    s_mov_b64 exec, 1")
        e(f"    v_mov_b32 v{vB}, s60")
        e(f"    s_lshl_b32 s{sT0}, s2, 2")
        e(f"    v_mov_b32 v{vA}, s{sT0}")
        e(f"    buffer_store_dword v{vB}, v{vA}, {sr(SRD_M,4)}, 0 offen")
    e("L_end:")
    e("    s_endpgm")
    e('.section .rodata,"a"')
    e(".p2align 6")
    e(f".amdhsa_kernel {NAME}_kernel")
    e(f"  .amdhsa_next_free_vgpr {NV}")
    e("  .amdhsa_next_free_sgpr 64")
    e(f"  .amdhsa_accum_offset {NV}")
    e("  .amdhsa_group_segment_fixed_size 0")
    e("  .amdhsa_kernarg_size 72")
    e("  .amdhsa_user_sgpr_count 2")
    e("  .amdhsa_user_sgpr_kernarg_segment_ptr 1")
    e("  .amdhsa_system_sgpr_workgroup_id_x 1")
    e(".end_amdhsa_kernel")
    return "\n".join(L) + "\n"

def parser():
    ap = argparse.ArgumentParser()
    ap.add_argument("--r", type=int, default=5)
    ap.add_argument("--r0", type=int, default=0)
    ap.add_argument("--rs", type=int, default=0)
    ap.add_argument("--r2", type=int, default=0)
    ap.add_argument("--n2", type=int, default=0)
    ap.add_argument("--pvnow", type=int, default=1)
    ap.add_argument("--align", type=int, default=0)
    ap.add_argument("--stamp", type=int, default=0)
    ap.add_argument("--dbg", type=int, default=0)
    ap.add_argument("--stc", default="")
    ap.add_argument("--qc", default="")
    ap.add_argument("-o", default="/dev/stdout")
    return ap
if __name__ == "__main__":
    a = parser().parse_args()
    if a.stc: a.stc = " " + a.stc.replace(",", " ")
    if a.qc: a.qc = " " + a.qc.replace(",", " ")
    if a.rs and not a.r2: a.r2 = a.r
    open(a.o, "w").write(gen(a))
```

```python
import argparse, struct, math
from gen import NAME, HEADER, f32bits

def gen(a):
    NW, NP, NBLK = 4, 5, 32
    R = a.r
    RS = max(R, a.r2, a.rs)
    assert 5 <= RS <= 11
    cache = " nt"
    L = []; e = L.append
    sQ, sKC, sVC, sKT, sVT, sMK, sOUT = 4, 6, 8, 10, 12, 14, 16
    SRD, sVB, SRD_Q, SRD_O, SRD_M = 20, 24, 28, 32, 36
    sW, sO0, sO1, sCNT, sC, sREM, sIDX, sT0, sT1, sNB, sLW, sTOG = 40, 41, 42, 43, 44, 45, 46, 47, 48, 49, 50, 51
    vSRC, vKR, vM, vL, vA, vB, vAL, vWA, vRA, vSA, vVR, vP, vF = 1, 2, 4, 5, 6, 7, 8, 9, 10, 11, 12, 16, 20
    vC4, vG4, vTR = 26, 27, 28
    vO, vVT, vST = 32, 64, 96
    vQ, vKF, vS, vBI = 32, 48, 64, 72
    NV = 256
    r = lambda b, n: f"v[{b}:{b+n-1}]"
    sr = lambda b, n: f"s[{b}:{b+n-1}]"
    SL = 1152
    HALF = 8 * SL
    TOG = 65536
    STB = NP * HALF
    OBASE = TOG + NP * HALF
    OSTR, OW = 528, 16 * 528
    LDS = OBASE + NP * OW
    STEP = NW * 8192
    S0 = RS + 3
    lab = [0]

    e(HEADER.rstrip())
    e(f"; @launch grid=(256,1,1) block=(320,1,1) lds={LDS}")
    e('.amdgcn_target "amdgcn-amd-amdhsa--gfx950"')
    e(".text")
    e(f".globl {NAME}_kernel")
    e(".p2align 8")
    e(f".type {NAME}_kernel,@function")
    e(f"{NAME}_kernel:")
    if a.stamp or a.dbg: e("    s_memrealtime s[56:57]")
    e("    s_load_dwordx16 s[4:19], s[0:1], 0")
    e(f"    v_lshrrev_b32 v{vA}, 6, v0")
    e(f"    v_and_b32 v{vC4}, 15, v0")
    e(f"    v_readfirstlane_b32 s{sW}, v{vA}")
    e(f"    v_bfe_u32 v{vG4}, v0, 4, 2")
    e("    s_cmp_ge_u32 s2, 256")
    e("    s_cbranch_scc1 L_end")
    e(f"    v_lshlrev_b32 v{vA}, 1, v{vG4}")
    e(f"    v_xor_b32 v{vA}, v{vA}, v{vC4}")
    e(f"    v_lshlrev_b32 v{vA}, 4, v{vA}")
    e(f"    v_lshl_add_u32 v{vSRC}, v{vG4}, 8, v{vA}")
    e(f"    s_lshl_b32 s{sT0}, s2, 20")
    e(f"    s_lshl_b32 s{sO0}, s{sW}, 13")
    e(f"    s_lshl_b32 s{sT1}, s2, 12")
    e(f"    s_add_u32 s{sT0}, s{sT0}, s{sO0}")
    e(f"    s_sub_u32 s{SRD+2}, 0x100000, s{sO0}")
    e(f"    s_mul_i32 s{sLW}, s{sW}, {HALF}")
    e(f"    s_mov_b32 s{SRD+3}, 0x00020000")
    e(f"    s_mov_b32 s{sO0}, 0")
    e(f"    s_mov_b32 m0, s{sLW}")
    e(f"    s_cmp_eq_u32 s{sW}, {NW}")
    e(f"    s_cselect_b32 s{sT0}, s{sT1}, s{sT0}")
    e(f"    s_cselect_b32 s{SRD+2}, 4096, s{SRD+2}")
    e(f"    s_cselect_b32 s{sNB}, 1, {NBLK}")
    e("    s_waitcnt lgkmcnt(0)")
    e(f"    s_cselect_b64 {sr(sKC,2)}, {sr(sKT,2)}, {sr(sKC,2)}")
    e(f"    s_cselect_b64 {sr(sVC,2)}, {sr(sVT,2)}, {sr(sVC,2)}")
    e(f"    s_add_u32 s{SRD}, s{sKC}, s{sT0}")
    e(f"    s_addc_u32 s{SRD+1}, s{sKC+1}, 0")

    def pre_load(s, m0done=False):
        j = s % 8
        if not m0done:
            e(f"    s_add_u32 m0, s{sLW}, {j*SL - 1024*(j&3)}")
    def load(s, switch):
        j = s % 8
        so = sO0 if j < 4 else sO1
        e(f"    buffer_load_dwordx4 v{vSRC}, {sr(SRD,4)}, s{so} offen offset:{1024*(j&3)}{cache} lds")
        if j == 3:
            e(f"    s_add_u32 s{sO1}, s{sO0}, 4096")
        if j == 7:
            e(f"    s_add_u32 s{sO0}, s{sO0}, {STEP}")
            e(f"    s_xor_b32 s{sLW}, s{sLW}, {TOG}")
            if switch:
                e(f"    s_sub_u32 s{sREM}, s{sREM}, 1")
                e(f"    s_cmp_eq_u32 s{sREM}, 0")
                e(f"    s_cselect_b64 {sr(SRD,2)}, {sr(sVB,2)}, {sr(SRD,2)}")
                e(f"    s_cselect_b32 s{sO0}, 0, s{sO0}")
    def wait(boost):
        if boost and RS > R:
            lab[0] += 1
            e(f"    s_cbranch_vccnz L_b{lab[0]}")
            e(f"    s_waitcnt vmcnt({R-1})")
            e(f"L_b{lab[0]}:")
            e(f"    s_waitcnt vmcnt({a.r2-1})")
        else:
            e(f"    s_waitcnt vmcnt({R-1})")

    R0 = min(a.r0 or R, S0)
    QAT = 4
    def setup_rest():
        e(f"    s_add_u32 s{sVB}, s{sVC}, s{sT0}")
        e(f"    s_addc_u32 s{sVB+1}, s{sVC+1}, 0")
        e(f"    s_mov_b32 s{sREM}, s{sNB}")
        e(f"    s_add_u32 s{SRD_Q}, s{sQ}, s{sT1}")
        e(f"    s_addc_u32 s{SRD_Q+1}, s{sQ+1}, 0")
        e(f"    s_mov_b32 s{SRD_Q+2}, 4096")
        e(f"    s_mov_b32 s{SRD_Q+3}, 0x00020000")
        e(f"    v_lshlrev_b32 v{vAL}, 8, v{vC4}")
        e(f"    v_lshl_add_u32 v{vAL}, v{vG4}, 4, v{vAL}")
        for m in range(4):
            e(f"    buffer_load_dwordx4 {r(vQ+4*m,4)}, v{vAL}, {sr(SRD_Q,4)}, 0 offen offset:{64*m}{a.qc}")
    for s in range(R0):
        if s == QAT: setup_rest()
        if s > 0:
            pre_load(s)
            e("    s_nop 0")
        load(s, True)
    e(f"    s_mul_i32 s{sT0}, s{sW}, {HALF}")
    e(f"    v_lshrrev_b32 v{vA}, 2, v{vC4}")
    e(f"    v_mul_u32_u24 v{vKR}, {SL}, v{vA}")
    e(f"    v_and_b32 v{vB}, 3, v{vC4}")
    e(f"    v_lshl_add_u32 v{vKR}, v{vB}, 8, v{vKR}")
    e(f"    v_lshlrev_b32 v{vB}, 1, v{vB}")
    e(f"    v_xor_b32 v{vB}, v{vB}, v{vG4}")
    e(f"    v_lshl_add_u32 v{vKR}, v{vB}, 4, v{vKR}")
    e(f"    v_add_u32 v{vKR}, s{sT0}, v{vKR}")
    e(f"    v_xor_b32 v{vB}, 4, v{vB}")
    e(f"    v_lshlrev_b32 v{vB}, 4, v{vB}")
    e(f"    v_and_b32 v{vKR+1}, 0xffffff8f, v{vKR}")
    e(f"    v_or_b32 v{vKR+1}, v{vKR+1}, v{vB}")
    e(f"    v_mul_u32_u24 v{vVR}, {SL}, v{vG4}")
    e(f"    v_lshl_add_u32 v{vVR}, v{vA}, 8, v{vVR}")
    e(f"    v_and_b32 v{vB}, 3, v{vC4}")
    e(f"    v_lshl_add_u32 v{vVR}, v{vB}, 3, v{vVR}")
    e(f"    v_lshl_add_u32 v{vVR}, v{vA}, 5, v{vVR}")
    e(f"    v_add_u32 v{vVR}, s{sT0}, v{vVR}")
    e(f"    s_and_b32 s{sTOG}, s{sNB}, 1")
    e(f"    s_lshl_b32 s{sTOG}, s{sTOG}, 16")
    e(f"    v_xor_b32 v{vVR}, s{sTOG}, v{vVR}")
    for k in range(1, 4):
        e(f"    v_xor_b32 v{vVR+k}, {32*k}, v{vVR}")
    c = (128 ** -0.5) * math.log2(math.e)
    e(f"    s_mov_b32 s{sC}, {f32bits(c):#x}")
    e(f"    s_lshl_b32 s{sT0}, s{sW}, 3")
    e(f"    s_add_u32 s{sT0}, s{sT0}, {STB}")
    e(f"    v_lshl_add_u32 v{vSA}, v{vC4}, 6, s{sT0}")
    e(f"    s_mul_i32 s{sT0}, s{sW}, {OW}")
    e(f"    s_add_u32 s{sT0}, s{sT0}, {OBASE}")
    e(f"    v_mul_u32_u24 v{vWA}, {OSTR}, v{vC4}")
    e(f"    v_lshl_add_u32 v{vWA}, v{vG4}, 4, v{vWA}")
    e(f"    v_add_u32 v{vWA}, s{sT0}, v{vWA}")
    e(f"    v_lshrrev_b32 v{vA}, 4, v0")
    e(f"    v_mul_u32_u24 v{vRA}, {OSTR}, v{vA}")
    e(f"    v_lshl_add_u32 v{vRA}, v{vC4}, 5, v{vRA}")
    e(f"    v_add_u32 v{vRA}, {OBASE}, v{vRA}")
    e(f"    s_add_u32 s{SRD_O}, s{sOUT}, s{sT1}")
    e(f"    s_addc_u32 s{SRD_O+1}, s{sOUT+1}, 0")
    e(f"    s_mov_b32 s{SRD_O+2}, 4096")
    e(f"    s_mov_b32 s{SRD_O+3}, 0x00020000")
    e(f"    v_mov_b32 v{vM}, 0xff800000")
    e(f"    v_mov_b32 v{vL}, 0")
    for i in range(8): e(f"    v_mov_b32 v{vBI+i}, 0")
    e(f"    s_mov_b32 s{sIDX}, 0")
    e(f"    s_mov_b32 s{sCNT}, s{sNB}")
    e("    s_mov_b64 vcc, 0")
    e(f"    s_cmp_lg_u32 s{sW}, {NW}")
    e("    s_cbranch_scc1 L_nomask")
    e(f"    s_lshr_b32 s{sT0}, s2, 5")
    e(f"    s_lshl_b32 s{sT0}, s{sT0}, 9")
    e(f"    s_add_u32 s{SRD_M}, s{sMK}, s{sT0}")
    e(f"    s_addc_u32 s{SRD_M+1}, s{sMK+1}, 0")
    e(f"    s_mov_b32 s{SRD_M+2}, 512")
    e(f"    s_mov_b32 s{SRD_M+3}, 0x00020000")
    e(f"    v_lshlrev_b32 v{vA}, 5, v{vC4}")
    e(f"    v_lshl_add_u32 v{vA}, v{vG4}, 3, v{vA}")
    e(f"    buffer_load_dwordx2 {r(vP,2)}, v{vA}, {sr(SRD_M,4)}, 0 offen")
    big = 1e9 * math.sqrt(128.0)
    e(f"    s_mov_b32 s{sT0}, {f32bits(big):#x}")
    for i in range(4): e(f"    v_mov_b32 v{vBI+4+i}, 0xff800000")
    e("    s_waitcnt vmcnt(0)")
    e(f"    v_lshlrev_b32 v{vBI}, 16, v{vP}")
    e(f"    v_and_b32 v{vBI+1}, 0xffff0000, v{vP}")
    e(f"    v_lshlrev_b32 v{vBI+2}, 16, v{vP+1}")
    e(f"    v_and_b32 v{vBI+3}, 0xffff0000, v{vP+1}")
    for i in range(4): e(f"    v_fma_f32 v{vBI+i}, v{vBI+i}, s{sT0}, -s{sT0}")
    e("L_nomask:")

    def xlane_reduce(op, va, vb):
        e(f"    v_mov_b32 v{vb}, v{va}")
        e("    s_nop 1")
        e(f"    v_permlane32_swap_b32 v{va}, v{vb}")
        e(f"    {op} v{va}, v{va}, v{vb}")
        e(f"    v_mov_b32 v{vb}, v{va}")
        e("    s_nop 1")
        e(f"    v_permlane16_swap_b32 v{va}, v{vb}")
        e(f"    {op} v{va}, v{va}, v{vb}")

    for s in range(R0, S0):
        pre_load(s)
        extra = 4 if s - R < QAT else 0
        e(f"    s_waitcnt vmcnt({R - 1 + extra})")
        load(s, True)

    def trace(lane):
        e("    s_memrealtime s[60:61]")
        e("    s_waitcnt lgkmcnt(0)")
        e(f"    v_writelane_b32 v{vTR}, s60, {lane}")
    def trace_dyn():
        e("    s_memrealtime s[60:61]")
        e("    s_lshr_b32 s62, s55, 1")
        e("    s_waitcnt lgkmcnt(0)")
        e("    s_mov_b32 m0, s62")
        e(f"    v_writelane_b32 v{vTR}, s60, m0")
        e("    s_add_u32 s55, s55, 1")
    if a.stamp:
        e(f"    v_mov_b32 v{vTR}, 0")
        e(f"    v_writelane_b32 v{vTR}, s56, 0")
        trace(1)
        e("    s_mov_b32 s55, 5")

    if a.dbg:
        e("    s_memrealtime s[58:59]")
        e("    s_waitcnt lgkmcnt(0)")
    def kread(t):
        for m in range(4):
            e(f"    ds_read_b128 {r(vKF+4*m,4)}, v{vKR+(m&1)} offset:{t*4*SL + 128*(m>>1)}")
        if t == 1:
            for k in range(2): e(f"    v_xor_b32 v{vKR+k}, {TOG}, v{vKR+k}")
    def qk(t):
        for m in range(4):
            e(f"    s_waitcnt lgkmcnt({3-m})")
            cc = r(vBI+4*t, 4) if m == 0 else r(vS+4*t, 4)
            e(f"    v_mfma_f32_16x16x32_bf16 {r(vS+4*t,4)}, {r(vKF+4*m,4)}, {r(vQ+4*m,4)}, {cc}")
    def sm1():
        e(f"    v_max3_f32 v{vA}, v{vS}, v{vS+1}, v{vS+2}")
        e("    s_nop 3")
        e(f"    v_max3_f32 v{vB}, v{vS+3}, v{vS+4}, v{vS+5}")
        e(f"    v_max3_f32 v{vA}, v{vA}, v{vS+6}, v{vS+7}")
        e(f"    v_max_f32 v{vA}, v{vA}, v{vB}")
        xlane_reduce("v_max_f32", vA, vB)
        e(f"    v_mul_f32 v{vA}, s{sC}, v{vA}")
        e(f"    v_max_f32 v{vA}, v{vA}, v{vM}")
        e(f"    v_sub_f32 v{vAL}, v{vM}, v{vA}")
        e(f"    v_mov_b32 v{vM}, v{vA}")
        e(f"    v_exp_f32 v{vAL}, v{vAL}")
    def sm2():
        for i in range(8): e(f"    v_fma_f32 v{vS+i}, v{vS+i}, s{sC}, -v{vM}")
        for i in range(8): e(f"    v_exp_f32 v{vS+i}, v{vS+i}")
        e(f"    v_add_f32 v{vA}, v{vS}, v{vS+1}")
        e(f"    v_add_f32 v{vB}, v{vS+2}, v{vS+3}")
        e(f"    v_fma_f32 v{vL}, v{vL}, v{vAL}, v{vA}")
        e(f"    v_add_f32 v{vA}, v{vS+4}, v{vS+5}")
        e(f"    v_add_f32 v{vL}, v{vL}, v{vB}")
        e(f"    v_add_f32 v{vB}, v{vS+6}, v{vS+7}")
        e(f"    v_add_f32 v{vL}, v{vL}, v{vA}")
        for p in range(4): e(f"    v_cvt_pk_bf16_f32 v{vP+p}, v{vS+2*p}, v{vS+2*p+1}")
        e(f"    v_add_f32 v{vL}, v{vL}, v{vB}")
        e(f"    s_set_gpr_idx_on s{sIDX}, gpr_idx(DST)")
        for p in range(4): e(f"    v_mov_b32 v{vST+p}, v{vP+p}")
        e(f"    v_mov_b32 v{vST+4}, v{vAL}")
        e("    s_set_gpr_idx_off")
        e(f"    s_add_u32 s{sIDX}, s{sIDX}, 5")
    t1 = {3: [lambda: kread(0)], 4: [lambda: qk(0)], 7: [lambda: kread(1)], 8: [lambda: qk(1)], 9: [sm1], 10: [sm2]}
    if a.align: e(f"    .p2align {a.align}")
    e("L_p1:")
    if a.stamp: trace_dyn()
    for s in range(S0, S0 + 8):
        pre_load(s)
        wait(False)
        load(s, True)
        for t in t1.get(s - RS, []): t()
    e(f"    s_sub_u32 s{sCNT}, s{sCNT}, 1")
    e(f"    s_cmp_lg_u32 s{sCNT}, 0")
    e("    s_cbranch_scc1 L_p1")

    xlane_reduce("v_add_f32", vL, vB)
    e(f"    ds_write_b64 v{vSA}, {r(vM,2)}")
    for i in range(32): e(f"    v_mov_b32 v{vO+i}, 0")
    e(f"    v_lshrrev_b32 v{vA}, 4, v0")
    e(f"    v_lshlrev_b32 v{vA}, 6, v{vA}")
    e(f"    s_mov_b32 s{sIDX}, 0")
    e(f"    s_mov_b32 s{sCNT}, s{sNB}")
    e(f"    s_cmp_eq_u32 s{sW}, {NW}")
    e("    s_cselect_b64 exec, 0, -1")
    e("    s_waitcnt lgkmcnt(0)")
    e("    s_cbranch_scc1 L_nobar1")
    e("    s_barrier")
    e("L_nobar1:")
    ST = vVT
    for i in range(3):
        e(f"    ds_read_b128 {r(ST+4*i,4)}, v{vA} offset:{STB + 16*i}")
    e("    s_waitcnt lgkmcnt(0)")
    e(f"    v_max3_f32 v{vA}, v{ST}, v{ST+2}, v{ST+4}")
    e(f"    v_max3_f32 v{vA}, v{vA}, v{ST+6}, v{ST+8}")
    for w in range(NP): e(f"    v_sub_f32 v{vF+w}, v{ST+2*w}, v{vA}")
    for w in range(NP): e(f"    v_exp_f32 v{vF+w}, v{vF+w}")
    e("    s_nop 0")
    e(f"    v_mul_f32 v{vB}, v{vF}, v{ST+1}")
    for w in range(1, NP): e(f"    v_fma_f32 v{vB}, v{vF+w}, v{ST+2*w+1}, v{vB}")
    e(f"    v_rcp_f32 v{vB}, v{vB}")
    e("    s_nop 0")
    for w in range(NP): e(f"    v_mul_f32 v{vF+w}, v{vF+w}, v{vB}")
    e("    s_mov_b64 exec, -1")

    def vread(t):
        for jd in range(8):
            e(f"    ds_read_b64_tr_b16 {r(vVT+4*jd+2*t,2)}, v{vVR+(jd&3)} offset:{t*4*SL + 128*(jd>>2)}")
        if t == 1:
            for k in range(4): e(f"    v_xor_b32 v{vVR+k}, {TOG}, v{vVR+k}")
    def pfetch():
        e(f"    s_set_gpr_idx_on s{sIDX}, gpr_idx(SRC0)")
        for p in range(4): e(f"    v_mov_b32 v{vP+p}, v{vST+p}")
        e(f"    v_mov_b32 v{vAL}, v{vST+4}")
        e("    s_set_gpr_idx_off")
        e(f"    s_add_u32 s{sIDX}, s{sIDX}, 5")
        e("    s_waitcnt lgkmcnt(0)")
    def resc(half):
        for i in range(16*half, 16*half+16): e(f"    v_mul_f32 v{vO+i}, v{vO+i}, v{vAL}")
    def pv():
        e(f"    s_sub_u32 s{sCNT}, s{sCNT}, 1")
        if RS > R:
            e(f"    s_cmp_le_u32 s{sCNT}, {a.n2}")
            e("    s_cselect_b64 vcc, -1, 0")
        e(f"    s_cmp_eq_u32 s{sCNT}, 0")
        for jd in range(8):
            e(f"    s_waitcnt lgkmcnt({7-jd})")
            e(f"    v_mfma_f32_16x16x32_bf16 {r(vO+4*jd,4)}, {r(vVT+4*jd,4)}, {r(vP,4)}, {r(vO+4*jd,4)}")
        e("    s_cbranch_scc1 L_epi")
    v1 = [lambda: vread(1)] + ([pv] if a.pvnow else [])
    t2 = {3: [lambda: vread(0)], 4: [pfetch], 5: [lambda: resc(0)], 6: [lambda: resc(1)], 7: v1}
    if not a.pvnow: t2[8] = [pv]
    if a.align: e(f"    .p2align {a.align}")
    e("L_p2:")
    if a.stamp: trace_dyn()
    for s in range(S0, S0 + 8):
        pre_load(s)
        wait(True)
        load(s, False)
        for t in t2.get(s - RS, []): t()
    e("    s_branch L_p2")

    e("L_epi:")
    if a.stamp: trace(35)
    e(f"    s_cmp_eq_u32 s{sW}, {NW}")
    e(f"    v_lshlrev_b32 v{vA}, 4, v0")
    for jd in range(8):
        if jd == 0: e("    s_nop 0")
        e(f"    ds_write_b128 v{vWA}, {r(vO+4*jd,4)} offset:{64*jd}")
    e("    s_cselect_b64 exec, 0, -1")
    e("    s_waitcnt lgkmcnt(0)")
    e("    s_cbranch_scc1 L_nobar2")
    e("    s_barrier")
    e("L_nobar2:")
    if a.stamp: trace(36)
    PB = vST
    for w in range(NP):
        for x in range(2):
            e(f"    ds_read_b128 {r(PB+8*w+4*x,4)}, v{vRA} offset:{w*OW + 16*x}")
    for w in range(NP):
        e(f"    s_waitcnt lgkmcnt({2*(NP-1-w)})")
        for x in range(8):
            if w == 0: e(f"    v_mul_f32 v{vVT+x}, v{PB+x}, v{vF}")
            else: e(f"    v_fma_f32 v{vVT+x}, v{PB+8*w+x}, v{vF+w}, v{vVT+x}")
    for x in range(4): e(f"    v_cvt_pk_bf16_f32 v{vP+x}, v{vVT+2*x}, v{vVT+2*x+1}")
    e("    s_cbranch_scc1 L_end")
    e(f"    buffer_store_dwordx4 {r(vP,4)}, v{vA}, {sr(SRD_O,4)}, 0 offen{a.stc}")
    if a.stamp:
        e("    s_waitcnt vmcnt(0)")
        trace(37)
        e("    s_load_dwordx2 s[4:5], s[0:1], 64")
        e(f"    s_lshl_b32 s{sT0}, s2, 10")
        e(f"    v_lshlrev_b32 v{vA}, 2, v0")
        e("    s_waitcnt lgkmcnt(0)")
        e(f"    s_mov_b32 s{SRD_M}, s4")
        e(f"    s_mov_b32 s{SRD_M+1}, s5")
        e(f"    s_mov_b32 s{SRD_M+2}, 0x100000")
        e(f"    s_mov_b32 s{SRD_M+3}, 0x00020000")
        e(f"    buffer_store_dword v{vTR}, v{vA}, {sr(SRD_M,4)}, s{sT0} offen")
    if a.dbg > 1:
        e("L_hold:")
        e("    s_memrealtime s[60:61]")
        e("    s_waitcnt lgkmcnt(0)")
        e("    s_sub_u32 s60, s60, s56")
        e(f"    s_cmp_lt_u32 s60, {a.dbg}")
        e("    s_cbranch_scc1 L_hold")
    if a.dbg:
        e("    s_waitcnt vmcnt(0)")
        e("    s_memrealtime s[60:61]")
        e("    s_cmp_ge_u32 s2, 16")
        e("    s_cbranch_scc1 L_end")
        e(f"    s_cmp_lg_u32 s{sW}, 0")
        e("    s_cbranch_scc1 L_end")
        e("    s_waitcnt lgkmcnt(0)")
        e("    s_sub_u32 s60, s60, s56")
        e("    s_sub_u32 s58, s58, s56")
        e("    s_mul_i32 s58, s58, 100000")
        e("    s_add_u32 s60, s60, s58")
        e(f"    s_mov_b32 s{SRD_M}, s18")
        e(f"    s_mov_b32 s{SRD_M+1}, s19")
        e(f"    s_mov_b32 s{SRD_M+2}, 256")
        e(f"    s_mov_b32 s{SRD_M+3}, 0x00020000")
        e("    s_mov_b64 exec, 1")
        e(f"    v_mov_b32 v{vB}, s60")
        e(f"    s_lshl_b32 s{sT0}, s2, 2")
        e(f"    v_mov_b32 v{vA}, s{sT0}")
        e(f"    buffer_store_dword v{vB}, v{vA}, {sr(SRD_M,4)}, 0 offen")
    e("L_end:")
    e("    s_endpgm")
    e('.section .rodata,"a"')
    e(".p2align 6")
    e(f".amdhsa_kernel {NAME}_kernel")
    e(f"  .amdhsa_next_free_vgpr {NV}")
    e("  .amdhsa_next_free_sgpr 64")
    e(f"  .amdhsa_accum_offset {NV}")
    e("  .amdhsa_group_segment_fixed_size 0")
    e("  .amdhsa_kernarg_size 72")
    e("  .amdhsa_user_sgpr_count 2")
    e("  .amdhsa_user_sgpr_kernarg_segment_ptr 1")
    e("  .amdhsa_system_sgpr_workgroup_id_x 1")
    e(".end_amdhsa_kernel")
    return "\n".join(L) + "\n"

def parser():
    ap = argparse.ArgumentParser()
    ap.add_argument("--r", type=int, default=5)
    ap.add_argument("--r0", type=int, default=0)
    ap.add_argument("--rs", type=int, default=0)
    ap.add_argument("--r2", type=int, default=0)
    ap.add_argument("--n2", type=int, default=0)
    ap.add_argument("--pvnow", type=int, default=1)
    ap.add_argument("--align", type=int, default=0)
    ap.add_argument("--stamp", type=int, default=0)
    ap.add_argument("--dbg", type=int, default=0)
    ap.add_argument("--stc", default="")
    ap.add_argument("--qc", default="")
    ap.add_argument("-o", default="/dev/stdout")
    return ap
if __name__ == "__main__":
    a = parser().parse_args()
    if a.stc: a.stc = " " + a.stc.replace(",", " ")
    if a.qc: a.qc = " " + a.qc.replace(",", " ")
    if a.rs and not a.r2: a.r2 = a.r
    open(a.o, "w").write(gen(a))
```

```python
import argparse, struct, math
from gen import NAME, HEADER, f32bits

def gen(a):
    NW, NP, NBLK = 4, 5, 32
    R = a.r
    RS = max(R, a.r2, a.rs)
    assert 5 <= RS <= 11
    cache = " nt"
    L = []; e = L.append
    sQ, sKC, sVC, sKT, sVT, sMK, sOUT = 4, 6, 8, 10, 12, 14, 16
    SRD, sVB, SRD_Q, SRD_O, SRD_M = 20, 24, 28, 32, 36
    sW, sO0, sO1, sCNT, sC, sREM, sIDX, sT0, sT1, sNB, sLW, sTOG = 40, 41, 42, 43, 44, 45, 46, 47, 48, 49, 50, 51
    vSRC, vKR, vM, vL, vA, vB, vAL, vWA, vRA, vSA, vVR, vP, vF = 1, 2, 4, 5, 6, 7, 8, 9, 10, 11, 12, 16, 20
    vC4, vG4, vTR = 26, 27, 28
    vO, vVT, vST = 32, 64, 96
    vQ, vKF, vS, vBI = 32, 48, 64, 72
    NV = 256
    r = lambda b, n: f"v[{b}:{b+n-1}]"
    sr = lambda b, n: f"s[{b}:{b+n-1}]"
    SL = 1152
    HALF = 8 * SL
    TOG = 65536
    STB = NP * HALF
    OBASE = TOG + NP * HALF
    OSTR, OW = 528, 16 * 528
    LDS = OBASE + NP * OW
    STEP = NW * 8192
    S0 = RS + 3
    lab = [0]

    e(HEADER.rstrip())
    e(f"; @launch grid=(256,1,1) block=(320,1,1) lds={LDS}")
    e('.amdgcn_target "amdgcn-amd-amdhsa--gfx950"')
    e(".text")
    e(f".globl {NAME}_kernel")
    e(".p2align 8")
    e(f".type {NAME}_kernel,@function")
    e(f"{NAME}_kernel:")
    if a.stamp or a.dbg: e("    s_memrealtime s[56:57]")
    e("    s_load_dwordx16 s[4:19], s[0:1], 0")
    e(f"    v_lshrrev_b32 v{vA}, 6, v0")
    e(f"    v_and_b32 v{vC4}, 15, v0")
    e(f"    v_readfirstlane_b32 s{sW}, v{vA}")
    e(f"    v_bfe_u32 v{vG4}, v0, 4, 2")
    e("    s_cmp_ge_u32 s2, 256")
    e("    s_cbranch_scc1 L_end")
    e(f"    v_lshlrev_b32 v{vA}, 1, v{vG4}")
    e(f"    v_xor_b32 v{vA}, v{vA}, v{vC4}")
    e(f"    v_lshlrev_b32 v{vA}, 4, v{vA}")
    e(f"    v_lshl_add_u32 v{vSRC}, v{vG4}, 8, v{vA}")
    e(f"    s_lshl_b32 s{sT0}, s2, 20")
    e(f"    s_lshl_b32 s{sO0}, s{sW}, 13")
    e(f"    s_lshl_b32 s{sT1}, s2, 12")
    e(f"    s_add_u32 s{sT0}, s{sT0}, s{sO0}")
    e(f"    s_sub_u32 s{SRD+2}, 0x100000, s{sO0}")
    e(f"    s_mul_i32 s{sLW}, s{sW}, {HALF}")
    e(f"    s_mov_b32 s{SRD+3}, 0x00020000")
    e(f"    s_mov_b32 s{sO0}, 0")
    e(f"    s_mov_b32 m0, s{sLW}")
    e(f"    s_cmp_eq_u32 s{sW}, {NW}")
    e(f"    s_cselect_b32 s{sT0}, s{sT1}, s{sT0}")
    e(f"    s_cselect_b32 s{SRD+2}, 4096, s{SRD+2}")
    e(f"    s_cselect_b32 s{sNB}, 1, {NBLK}")
    e("    s_waitcnt lgkmcnt(0)")
    e(f"    s_cselect_b64 {sr(sKC,2)}, {sr(sKT,2)}, {sr(sKC,2)}")
    e(f"    s_cselect_b64 {sr(sVC,2)}, {sr(sVT,2)}, {sr(sVC,2)}")
    e(f"    s_add_u32 s{SRD}, s{sKC}, s{sT0}")
    e(f"    s_addc_u32 s{SRD+1}, s{sKC+1}, 0")

    def pre_load(s, m0done=False):
        j = s % 8
        if not m0done:
            e(f"    s_add_u32 m0, s{sLW}, {j*SL - 1024*(j&3)}")
    def load(s, switch):
        j = s % 8
        so = sO0 if j < 4 else sO1
        e(f"    buffer_load_dwordx4 v{vSRC}, {sr(SRD,4)}, s{so} offen offset:{1024*(j&3)}{cache} lds")
        if j == 3:
            e(f"    s_add_u32 s{sO1}, s{sO0}, 4096")
        if j == 7:
            e(f"    s_add_u32 s{sO0}, s{sO0}, {STEP}")
            e(f"    s_xor_b32 s{sLW}, s{sLW}, {TOG}")
            if switch:
                e(f"    s_sub_u32 s{sREM}, s{sREM}, 1")
                e(f"    s_cmp_eq_u32 s{sREM}, 0")
                e(f"    s_cselect_b64 {sr(SRD,2)}, {sr(sVB,2)}, {sr(SRD,2)}")
                e(f"    s_cselect_b32 s{sO0}, 0, s{sO0}")
    def wait(boost):
        if boost and RS > R:
            lab[0] += 1
            e(f"    s_cbranch_vccnz L_b{lab[0]}")
            e(f"    s_waitcnt vmcnt({R-1})")
            e(f"L_b{lab[0]}:")
            e(f"    s_waitcnt vmcnt({a.r2-1})")
        else:
            e(f"    s_waitcnt vmcnt({R-1})")

    R0 = min(a.r0 or R, S0)
    QAT = 4
    def setup_rest():
        e(f"    s_add_u32 s{sVB}, s{sVC}, s{sT0}")
        e(f"    s_addc_u32 s{sVB+1}, s{sVC+1}, 0")
        e(f"    s_mov_b32 s{sREM}, s{sNB}")
        e(f"    s_add_u32 s{SRD_Q}, s{sQ}, s{sT1}")
        e(f"    s_addc_u32 s{SRD_Q+1}, s{sQ+1}, 0")
        e(f"    s_mov_b32 s{SRD_Q+2}, 4096")
        e(f"    s_mov_b32 s{SRD_Q+3}, 0x00020000")
        e(f"    v_lshlrev_b32 v{vAL}, 8, v{vC4}")
        e(f"    v_lshl_add_u32 v{vAL}, v{vG4}, 4, v{vAL}")
        for m in range(4):
            e(f"    buffer_load_dwordx4 {r(vQ+4*m,4)}, v{vAL}, {sr(SRD_Q,4)}, 0 offen offset:{64*m}{a.qc}")
    for s in range(R0):
        if s == QAT: setup_rest()
        if s > 0:
            pre_load(s)
            e("    s_nop 0")
        load(s, True)
    e(f"    s_mul_i32 s{sT0}, s{sW}, {HALF}")
    e(f"    v_lshrrev_b32 v{vA}, 2, v{vC4}")
    e(f"    v_mul_u32_u24 v{vKR}, {SL}, v{vA}")
    e(f"    v_and_b32 v{vB}, 3, v{vC4}")
    e(f"    v_lshl_add_u32 v{vKR}, v{vB}, 8, v{vKR}")
    e(f"    v_lshlrev_b32 v{vB}, 1, v{vB}")
    e(f"    v_xor_b32 v{vB}, v{vB}, v{vG4}")
    e(f"    v_lshl_add_u32 v{vKR}, v{vB}, 4, v{vKR}")
    e(f"    v_add_u32 v{vKR}, s{sT0}, v{vKR}")
    e(f"    v_xor_b32 v{vB}, 4, v{vB}")
    e(f"    v_lshlrev_b32 v{vB}, 4, v{vB}")
    e(f"    v_and_b32 v{vKR+1}, 0xffffff8f, v{vKR}")
    e(f"    v_or_b32 v{vKR+1}, v{vKR+1}, v{vB}")
    e(f"    v_mul_u32_u24 v{vVR}, {SL}, v{vG4}")
    e(f"    v_lshl_add_u32 v{vVR}, v{vA}, 8, v{vVR}")
    e(f"    v_and_b32 v{vB}, 3, v{vC4}")
    e(f"    v_lshl_add_u32 v{vVR}, v{vB}, 3, v{vVR}")
    e(f"    v_lshl_add_u32 v{vVR}, v{vA}, 5, v{vVR}")
    e(f"    v_add_u32 v{vVR}, s{sT0}, v{vVR}")
    e(f"    s_and_b32 s{sTOG}, s{sNB}, 1")
    e(f"    s_lshl_b32 s{sTOG}, s{sTOG}, 16")
    e(f"    v_xor_b32 v{vVR}, s{sTOG}, v{vVR}")
    for k in range(1, 4):
        e(f"    v_xor_b32 v{vVR+k}, {32*k}, v{vVR}")
    c = (128 ** -0.5) * math.log2(math.e)
    e(f"    s_mov_b32 s{sC}, {f32bits(c):#x}")
    e(f"    s_lshl_b32 s{sT0}, s{sW}, 3")
    e(f"    s_add_u32 s{sT0}, s{sT0}, {STB}")
    e(f"    v_lshl_add_u32 v{vSA}, v{vC4}, 6, s{sT0}")
    e(f"    s_mul_i32 s{sT0}, s{sW}, {OW}")
    e(f"    s_add_u32 s{sT0}, s{sT0}, {OBASE}")
    e(f"    v_mul_u32_u24 v{vWA}, {OSTR}, v{vC4}")
    e(f"    v_lshl_add_u32 v{vWA}, v{vG4}, 4, v{vWA}")
    e(f"    v_add_u32 v{vWA}, s{sT0}, v{vWA}")
    e(f"    v_lshrrev_b32 v{vA}, 4, v0")
    e(f"    v_mul_u32_u24 v{vRA}, {OSTR}, v{vA}")
    e(f"    v_lshl_add_u32 v{vRA}, v{vC4}, 5, v{vRA}")
    e(f"    v_add_u32 v{vRA}, {OBASE}, v{vRA}")
    e(f"    s_add_u32 s{SRD_O}, s{sOUT}, s{sT1}")
    e(f"    s_addc_u32 s{SRD_O+1}, s{sOUT+1}, 0")
    e(f"    s_mov_b32 s{SRD_O+2}, 4096")
    e(f"    s_mov_b32 s{SRD_O+3}, 0x00020000")
    e(f"    v_mov_b32 v{vM}, 0xff800000")
    e(f"    v_mov_b32 v{vL}, 0")
    for i in range(8): e(f"    v_mov_b32 v{vBI+i}, 0")
    e(f"    s_mov_b32 s{sIDX}, 0")
    e(f"    s_mov_b32 s{sCNT}, s{sNB}")
    e("    s_mov_b64 vcc, 0")
    e(f"    s_cmp_lg_u32 s{sW}, {NW}")
    e("    s_cbranch_scc1 L_nomask")
    e(f"    s_lshr_b32 s{sT0}, s2, 5")
    e(f"    s_lshl_b32 s{sT0}, s{sT0}, 9")
    e(f"    s_add_u32 s{SRD_M}, s{sMK}, s{sT0}")
    e(f"    s_addc_u32 s{SRD_M+1}, s{sMK+1}, 0")
    e(f"    s_mov_b32 s{SRD_M+2}, 512")
    e(f"    s_mov_b32 s{SRD_M+3}, 0x00020000")
    e(f"    v_lshlrev_b32 v{vA}, 5, v{vC4}")
    e(f"    v_lshl_add_u32 v{vA}, v{vG4}, 3, v{vA}")
    e(f"    buffer_load_dwordx2 {r(vP,2)}, v{vA}, {sr(SRD_M,4)}, 0 offen")
    big = 1e9 * math.sqrt(128.0)
    e(f"    s_mov_b32 s{sT0}, {f32bits(big):#x}")
    for i in range(4): e(f"    v_mov_b32 v{vBI+4+i}, 0xff800000")
    e("    s_waitcnt vmcnt(0)")
    e(f"    v_lshlrev_b32 v{vBI}, 16, v{vP}")
    e(f"    v_and_b32 v{vBI+1}, 0xffff0000, v{vP}")
    e(f"    v_lshlrev_b32 v{vBI+2}, 16, v{vP+1}")
    e(f"    v_and_b32 v{vBI+3}, 0xffff0000, v{vP+1}")
    for i in range(4): e(f"    v_fma_f32 v{vBI+i}, v{vBI+i}, s{sT0}, -s{sT0}")
    e("L_nomask:")

    def xlane_reduce(op, va, vb):
        e(f"    v_mov_b32 v{vb}, v{va}")
        e("    s_nop 1")
        e(f"    v_permlane32_swap_b32 v{va}, v{vb}")
        e(f"    {op} v{va}, v{va}, v{vb}")
        e(f"    v_mov_b32 v{vb}, v{va}")
        e("    s_nop 1")
        e(f"    v_permlane16_swap_b32 v{va}, v{vb}")
        e(f"    {op} v{va}, v{va}, v{vb}")

    for s in range(R0, S0):
        pre_load(s)
        extra = 4 if s - R < QAT else 0
        e(f"    s_waitcnt vmcnt({R - 1 + extra})")
        load(s, True)

    def trace(lane):
        e("    s_memrealtime s[60:61]")
        e("    s_waitcnt lgkmcnt(0)")
        e(f"    v_writelane_b32 v{vTR}, s60, {lane}")
    def trace_dyn():
        e("    s_memrealtime s[60:61]")
        e("    s_lshr_b32 s62, s55, 1")
        e("    s_waitcnt lgkmcnt(0)")
        e("    s_mov_b32 m0, s62")
        e(f"    v_writelane_b32 v{vTR}, s60, m0")
        e("    s_add_u32 s55, s55, 1")
    if a.stamp:
        e(f"    v_mov_b32 v{vTR}, 0")
        e(f"    v_writelane_b32 v{vTR}, s56, 0")
        trace(1)
        e("    s_mov_b32 s55, 5")

    if a.dbg:
        e("    s_memrealtime s[58:59]")
        e("    s_waitcnt lgkmcnt(0)")
    if a.absref >= 0:
        e(f"    s_cmp_lg_u32 s2, {a.absref}")
        e("    s_cbranch_scc1 L_noref")
        e(f"    s_cmp_lg_u32 s{sW}, {NW}")
        e("    s_cbranch_scc1 L_noref")
        e(f"    v_mov_b32 v{vA}, 128")
        e(f"    v_mov_b32 v{vB}, s56")
        e(f"    global_store_dword v{vA}, v{vB}, s[18:19] sc0 sc1")
        e("    s_waitcnt vmcnt(0)")
        e("L_noref:")
    def kread(t):
        for m in range(4):
            e(f"    ds_read_b128 {r(vKF+4*m,4)}, v{vKR+(m&1)} offset:{t*4*SL + 128*(m>>1)}")
        if t == 1:
            for k in range(2): e(f"    v_xor_b32 v{vKR+k}, {TOG}, v{vKR+k}")
    def qk(t):
        for m in range(4):
            e(f"    s_waitcnt lgkmcnt({3-m})")
            cc = r(vBI+4*t, 4) if m == 0 else r(vS+4*t, 4)
            e(f"    v_mfma_f32_16x16x32_bf16 {r(vS+4*t,4)}, {r(vKF+4*m,4)}, {r(vQ+4*m,4)}, {cc}")
    def sm1():
        e(f"    v_max3_f32 v{vA}, v{vS}, v{vS+1}, v{vS+2}")
        e("    s_nop 3")
        e(f"    v_max3_f32 v{vB}, v{vS+3}, v{vS+4}, v{vS+5}")
        e(f"    v_max3_f32 v{vA}, v{vA}, v{vS+6}, v{vS+7}")
        e(f"    v_max_f32 v{vA}, v{vA}, v{vB}")
        xlane_reduce("v_max_f32", vA, vB)
        e(f"    v_mul_f32 v{vA}, s{sC}, v{vA}")
        e(f"    v_max_f32 v{vA}, v{vA}, v{vM}")
        e(f"    v_sub_f32 v{vAL}, v{vM}, v{vA}")
        e(f"    v_mov_b32 v{vM}, v{vA}")
        e(f"    v_exp_f32 v{vAL}, v{vAL}")
    def sm2():
        for i in range(8): e(f"    v_fma_f32 v{vS+i}, v{vS+i}, s{sC}, -v{vM}")
        for i in range(8): e(f"    v_exp_f32 v{vS+i}, v{vS+i}")
        e(f"    v_add_f32 v{vA}, v{vS}, v{vS+1}")
        e(f"    v_add_f32 v{vB}, v{vS+2}, v{vS+3}")
        e(f"    v_fma_f32 v{vL}, v{vL}, v{vAL}, v{vA}")
        e(f"    v_add_f32 v{vA}, v{vS+4}, v{vS+5}")
        e(f"    v_add_f32 v{vL}, v{vL}, v{vB}")
        e(f"    v_add_f32 v{vB}, v{vS+6}, v{vS+7}")
        e(f"    v_add_f32 v{vL}, v{vL}, v{vA}")
        for p in range(4): e(f"    v_cvt_pk_bf16_f32 v{vP+p}, v{vS+2*p}, v{vS+2*p+1}")
        e(f"    v_add_f32 v{vL}, v{vL}, v{vB}")
        e(f"    s_set_gpr_idx_on s{sIDX}, gpr_idx(DST)")
        for p in range(4): e(f"    v_mov_b32 v{vST+p}, v{vP+p}")
        e(f"    v_mov_b32 v{vST+4}, v{vAL}")
        e("    s_set_gpr_idx_off")
        e(f"    s_add_u32 s{sIDX}, s{sIDX}, 5")
    t1 = {3: [lambda: kread(0)], 4: [lambda: qk(0)], 7: [lambda: kread(1)], 8: [lambda: qk(1)], 9: [sm1], 10: [sm2]}
    if a.align: e(f"    .p2align {a.align}")
    e("L_p1:")
    if a.stamp: trace_dyn()
    for s in range(S0, S0 + 8):
        pre_load(s)
        wait(False)
        load(s, True)
        for t in t1.get(s - RS, []): t()
    e(f"    s_sub_u32 s{sCNT}, s{sCNT}, 1")
    e(f"    s_cmp_lg_u32 s{sCNT}, 0")
    e("    s_cbranch_scc1 L_p1")

    xlane_reduce("v_add_f32", vL, vB)
    e(f"    ds_write_b64 v{vSA}, {r(vM,2)}")
    for i in range(32): e(f"    v_mov_b32 v{vO+i}, 0")
    e(f"    v_lshrrev_b32 v{vA}, 4, v0")
    e(f"    v_lshlrev_b32 v{vA}, 6, v{vA}")
    e(f"    s_mov_b32 s{sIDX}, 0")
    e(f"    s_mov_b32 s{sCNT}, s{sNB}")
    e(f"    s_cmp_eq_u32 s{sW}, {NW}")
    e("    s_cselect_b64 exec, 0, -1")
    e("    s_waitcnt lgkmcnt(0)")
    e("    s_cbranch_scc1 L_nobar1")
    e("    s_barrier")
    e("L_nobar1:")
    ST = vVT
    for i in range(3):
        e(f"    ds_read_b128 {r(ST+4*i,4)}, v{vA} offset:{STB + 16*i}")
    e("    s_waitcnt lgkmcnt(0)")
    e(f"    v_max3_f32 v{vA}, v{ST}, v{ST+2}, v{ST+4}")
    e(f"    v_max3_f32 v{vA}, v{vA}, v{ST+6}, v{ST+8}")
    for w in range(NP): e(f"    v_sub_f32 v{vF+w}, v{ST+2*w}, v{vA}")
    for w in range(NP): e(f"    v_exp_f32 v{vF+w}, v{vF+w}")
    e("    s_nop 0")
    e(f"    v_mul_f32 v{vB}, v{vF}, v{ST+1}")
    for w in range(1, NP): e(f"    v_fma_f32 v{vB}, v{vF+w}, v{ST+2*w+1}, v{vB}")
    e(f"    v_rcp_f32 v{vB}, v{vB}")
    e("    s_nop 0")
    for w in range(NP): e(f"    v_mul_f32 v{vF+w}, v{vF+w}, v{vB}")
    e("    s_mov_b64 exec, -1")

    def vread(t):
        for jd in range(8):
            e(f"    ds_read_b64_tr_b16 {r(vVT+4*jd+2*t,2)}, v{vVR+(jd&3)} offset:{t*4*SL + 128*(jd>>2)}")
        if t == 1:
            for k in range(4): e(f"    v_xor_b32 v{vVR+k}, {TOG}, v{vVR+k}")
    def pfetch():
        e(f"    s_set_gpr_idx_on s{sIDX}, gpr_idx(SRC0)")
        for p in range(4): e(f"    v_mov_b32 v{vP+p}, v{vST+p}")
        e(f"    v_mov_b32 v{vAL}, v{vST+4}")
        e("    s_set_gpr_idx_off")
        e(f"    s_add_u32 s{sIDX}, s{sIDX}, 5")
        e("    s_waitcnt lgkmcnt(0)")
    def resc(half):
        for i in range(16*half, 16*half+16): e(f"    v_mul_f32 v{vO+i}, v{vO+i}, v{vAL}")
    def pv():
        e(f"    s_sub_u32 s{sCNT}, s{sCNT}, 1")
        if RS > R:
            e(f"    s_cmp_le_u32 s{sCNT}, {a.n2}")
            e("    s_cselect_b64 vcc, -1, 0")
        e(f"    s_cmp_eq_u32 s{sCNT}, 0")
        for jd in range(8):
            e(f"    s_waitcnt lgkmcnt({7-jd})")
            e(f"    v_mfma_f32_16x16x32_bf16 {r(vO+4*jd,4)}, {r(vVT+4*jd,4)}, {r(vP,4)}, {r(vO+4*jd,4)}")
        e("    s_cbranch_scc1 L_epi")
    v1 = [lambda: vread(1)] + ([pv] if a.pvnow else [])
    t2 = {3: [lambda: vread(0)], 4: [pfetch], 5: [lambda: resc(0)], 6: [lambda: resc(1)], 7: v1}
    if not a.pvnow: t2[8] = [pv]
    if a.align: e(f"    .p2align {a.align}")
    e("L_p2:")
    if a.stamp: trace_dyn()
    for s in range(S0, S0 + 8):
        pre_load(s)
        wait(True)
        load(s, False)
        for t in t2.get(s - RS, []): t()
    e("    s_branch L_p2")

    e("L_epi:")
    if a.stamp: trace(35)
    e(f"    s_cmp_eq_u32 s{sW}, {NW}")
    e(f"    v_lshlrev_b32 v{vA}, 4, v0")
    for jd in range(8):
        if jd == 0: e("    s_nop 0")
        e(f"    ds_write_b128 v{vWA}, {r(vO+4*jd,4)} offset:{64*jd}")
    e("    s_cselect_b64 exec, 0, -1")
    e("    s_waitcnt lgkmcnt(0)")
    e("    s_cbranch_scc1 L_nobar2")
    e("    s_barrier")
    e("L_nobar2:")
    if a.stamp: trace(36)
    PB = vST
    for w in range(NP):
        for x in range(2):
            e(f"    ds_read_b128 {r(PB+8*w+4*x,4)}, v{vRA} offset:{w*OW + 16*x}")
    for w in range(NP):
        e(f"    s_waitcnt lgkmcnt({2*(NP-1-w)})")
        for x in range(8):
            if w == 0: e(f"    v_mul_f32 v{vVT+x}, v{PB+x}, v{vF}")
            else: e(f"    v_fma_f32 v{vVT+x}, v{PB+8*w+x}, v{vF+w}, v{vVT+x}")
    for x in range(4): e(f"    v_cvt_pk_bf16_f32 v{vP+x}, v{vVT+2*x}, v{vVT+2*x+1}")
    e("    s_cbranch_scc1 L_end")
    e(f"    buffer_store_dwordx4 {r(vP,4)}, v{vA}, {sr(SRD_O,4)}, 0 offen{a.stc}")
    if a.stamp:
        e("    s_waitcnt vmcnt(0)")
        trace(37)
        e("    s_load_dwordx2 s[4:5], s[0:1], 64")
        e(f"    s_lshl_b32 s{sT0}, s2, 10")
        e(f"    v_lshlrev_b32 v{vA}, 2, v0")
        e("    s_waitcnt lgkmcnt(0)")
        e(f"    s_mov_b32 s{SRD_M}, s4")
        e(f"    s_mov_b32 s{SRD_M+1}, s5")
        e(f"    s_mov_b32 s{SRD_M+2}, 0x100000")
        e(f"    s_mov_b32 s{SRD_M+3}, 0x00020000")
        e(f"    buffer_store_dword v{vTR}, v{vA}, {sr(SRD_M,4)}, s{sT0} offen")
    if a.dbg > 1:
        if a.absref >= 0:
            e(f"    v_mov_b32 v{vA}, 128")
            e(f"    global_load_dword v{vB}, v{vA}, s[18:19] sc0 sc1")
            e("    s_waitcnt vmcnt(0)")
            e(f"    v_readfirstlane_b32 s56, v{vB}")
            e("    s_nop 3")
        e("L_hold:")
        e("    s_sleep 4")
        e("    s_memrealtime s[60:61]")
        e("    s_waitcnt lgkmcnt(0)")
        e("    s_sub_u32 s60, s60, s56")
        e(f"    s_cmp_lt_u32 s60, {a.dbg}")
        e("    s_cbranch_scc1 L_hold")
    if a.dbg:
        e("    s_waitcnt vmcnt(0)")
        e("    s_memrealtime s[60:61]")
        e("    s_cmp_ge_u32 s2, 16")
        e("    s_cbranch_scc1 L_end")
        e(f"    s_cmp_lg_u32 s{sW}, 0")
        e("    s_cbranch_scc1 L_end")
        e("    s_waitcnt lgkmcnt(0)")
        e("    s_sub_u32 s60, s60, s56")
        e("    s_sub_u32 s58, s58, s56")
        e("    s_mul_i32 s58, s58, 100000")
        e("    s_add_u32 s60, s60, s58")
        e(f"    s_mov_b32 s{SRD_M}, s18")
        e(f"    s_mov_b32 s{SRD_M+1}, s19")
        e(f"    s_mov_b32 s{SRD_M+2}, 256")
        e(f"    s_mov_b32 s{SRD_M+3}, 0x00020000")
        e("    s_mov_b64 exec, 1")
        e(f"    v_mov_b32 v{vB}, s60")
        e(f"    s_lshl_b32 s{sT0}, s2, 2")
        e(f"    v_mov_b32 v{vA}, s{sT0}")
        e(f"    buffer_store_dword v{vB}, v{vA}, {sr(SRD_M,4)}, 0 offen")
    e("L_end:")
    e("    s_endpgm")
    e('.section .rodata,"a"')
    e(".p2align 6")
    e(f".amdhsa_kernel {NAME}_kernel")
    e(f"  .amdhsa_next_free_vgpr {NV}")
    e("  .amdhsa_next_free_sgpr 64")
    e(f"  .amdhsa_accum_offset {NV}")
    e("  .amdhsa_group_segment_fixed_size 0")
    e("  .amdhsa_kernarg_size 72")
    e("  .amdhsa_user_sgpr_count 2")
    e("  .amdhsa_user_sgpr_kernarg_segment_ptr 1")
    e("  .amdhsa_system_sgpr_workgroup_id_x 1")
    e(".end_amdhsa_kernel")
    return "\n".join(L) + "\n"

def parser():
    ap = argparse.ArgumentParser()
    ap.add_argument("--r", type=int, default=5)
    ap.add_argument("--r0", type=int, default=0)
    ap.add_argument("--rs", type=int, default=0)
    ap.add_argument("--r2", type=int, default=0)
    ap.add_argument("--n2", type=int, default=0)
    ap.add_argument("--pvnow", type=int, default=1)
    ap.add_argument("--align", type=int, default=0)
    ap.add_argument("--stamp", type=int, default=0)
    ap.add_argument("--dbg", type=int, default=0)
    ap.add_argument("--absref", type=int, default=-1)
    ap.add_argument("--stc", default="")
    ap.add_argument("--qc", default="")
    ap.add_argument("-o", default="/dev/stdout")
    return ap
if __name__ == "__main__":
    a = parser().parse_args()
    if a.stc: a.stc = " " + a.stc.replace(",", " ")
    if a.qc: a.qc = " " + a.qc.replace(",", " ")
    if a.rs and not a.r2: a.r2 = a.r
    open(a.o, "w").write(gen(a))
```

```python
import argparse, struct, math
from gen import NAME, HEADER, f32bits

def gen(a):
    NW, NP, NBLK = 4, 5, 32
    R = a.r
    RS = max(R, a.r2, a.rs)
    assert 5 <= RS <= 11
    cache = " nt"
    L = []; e = L.append
    sQ, sKC, sVC, sKT, sVT, sMK, sOUT = 4, 6, 8, 10, 12, 14, 16
    SRD, sVB, SRD_Q, SRD_O, SRD_M = 20, 24, 28, 32, 36
    sW, sO0, sO1, sCNT, sC, sREM, sIDX, sT0, sT1, sNB, sLW, sTOG = 40, 41, 42, 43, 44, 45, 46, 47, 48, 49, 50, 51
    vSRC, vKR, vM, vL, vA, vB, vAL, vWA, vRA, vSA, vVR, vP, vF = 1, 2, 4, 5, 6, 7, 8, 9, 10, 11, 12, 16, 20
    vC4, vG4, vTR = 26, 27, 28
    vO, vVT, vST = 32, 64, 96
    class Regs(list):
        def __add__(self, i): return self[i]
    vAC = Regs([2, 3, 4, 5, 11, 25, 29, 30])
    vQ, vKF, vS, vBI = 32, 48, 64, 72
    NV = 256
    r = lambda b, n: f"v[{b}:{b+n-1}]"
    sr = lambda b, n: f"s[{b}:{b+n-1}]"
    SL = 1152
    HALF = 8 * SL
    TOG = 65536
    STB = NP * HALF
    OBASE = TOG + NP * HALF
    OSTR, OW = 528, 16 * 528
    LDS = OBASE + NP * OW
    STEP = NW * 8192
    S0 = RS + 3
    lab = [0]

    e(HEADER.rstrip())
    e(f"; @launch grid=(256,1,1) block=(320,1,1) lds={LDS}")
    e('.amdgcn_target "amdgcn-amd-amdhsa--gfx950"')
    e(".text")
    e(f".globl {NAME}_kernel")
    e(".p2align 8")
    e(f".type {NAME}_kernel,@function")
    e(f"{NAME}_kernel:")
    if a.stamp or a.dbg or a.tau: e("    s_memrealtime s[56:57]")
    e("    s_load_dwordx16 s[4:19], s[0:1], 0")
    e(f"    v_lshrrev_b32 v{vA}, 6, v0")
    e(f"    v_and_b32 v{vC4}, 15, v0")
    e(f"    v_readfirstlane_b32 s{sW}, v{vA}")
    e(f"    v_bfe_u32 v{vG4}, v0, 4, 2")
    e("    s_cmp_ge_u32 s2, 256")
    e("    s_cbranch_scc1 L_end")
    e(f"    v_lshlrev_b32 v{vA}, 1, v{vG4}")
    e(f"    v_xor_b32 v{vA}, v{vA}, v{vC4}")
    e(f"    v_lshlrev_b32 v{vA}, 4, v{vA}")
    e(f"    v_lshl_add_u32 v{vSRC}, v{vG4}, 8, v{vA}")
    e(f"    s_lshl_b32 s{sT0}, s2, 20")
    e(f"    s_lshl_b32 s{sO0}, s{sW}, 13")
    e(f"    s_lshl_b32 s{sT1}, s2, 12")
    e(f"    s_add_u32 s{sT0}, s{sT0}, s{sO0}")
    e(f"    s_sub_u32 s{SRD+2}, 0x100000, s{sO0}")
    e(f"    s_mul_i32 s{sLW}, s{sW}, {HALF}")
    e(f"    s_mov_b32 s{SRD+3}, 0x00020000")
    e(f"    s_mov_b32 s{sO0}, 0")
    e(f"    s_mov_b32 m0, s{sLW}")
    e(f"    s_cmp_eq_u32 s{sW}, {NW}")
    e(f"    s_cselect_b32 s{sT0}, s{sT1}, s{sT0}")
    e(f"    s_cselect_b32 s{SRD+2}, 4096, s{SRD+2}")
    e(f"    s_cselect_b32 s{sNB}, 1, {NBLK}")
    e("    s_waitcnt lgkmcnt(0)")
    e(f"    s_cselect_b64 {sr(sKC,2)}, {sr(sKT,2)}, {sr(sKC,2)}")
    e(f"    s_cselect_b64 {sr(sVC,2)}, {sr(sVT,2)}, {sr(sVC,2)}")
    e(f"    s_add_u32 s{SRD}, s{sKC}, s{sT0}")
    e(f"    s_addc_u32 s{SRD+1}, s{sKC+1}, 0")

    ORD = [0, 2, 1, 3, 4, 6, 5, 7] if a.ord else list(range(8))
    def pre_load(s, m0done=False):
        j = ORD[s % 8]
        if not m0done:
            e(f"    s_add_u32 m0, s{sLW}, {j*SL - 1024*(j&3)}")
    def load(s, switch):
        j = ORD[s % 8]
        so = sO0 if j < 4 else sO1
        e(f"    buffer_load_dwordx4 v{vSRC}, {sr(SRD,4)}, s{so} offen offset:{1024*(j&3)}{cache} lds")
        if j == 3:
            e(f"    s_add_u32 s{sO1}, s{sO0}, 4096")
        if j == 7:
            e(f"    s_add_u32 s{sO0}, s{sO0}, {STEP}")
            e(f"    s_xor_b32 s{sLW}, s{sLW}, {TOG}")
            if switch:
                e(f"    s_sub_u32 s{sREM}, s{sREM}, 1")
                e(f"    s_cmp_eq_u32 s{sREM}, 0")
                e(f"    s_cselect_b64 {sr(SRD,2)}, {sr(sVB,2)}, {sr(SRD,2)}")
                e(f"    s_cselect_b32 s{sO0}, 0, s{sO0}")
    def duty():
        e("    s_sub_u32 s54, s54, 1")
        e("    s_cmp_eq_u32 s54, 0")
        e("    s_cselect_b64 vcc, -1, 0")
        e("    s_cselect_b32 s54, s53, s54")
    def pace_issue():
        e("    s_memrealtime s[60:61]")
    def pace():
        e(f"    s_add_u32 s54, s54, {a.tau}")
        e("    s_lshr_b32 s53, s54, 4")
        e("    s_sub_u32 s62, s60, s56")
        e("    s_cmp_gt_u32 s62, s53")
        e("    s_cselect_b64 vcc, -1, 0")
    SRD_D, vDO, vDT, vOWN, vLN = 36, 31, 26, 27, 28
    def cnt_for(ring, k):
        rel = (k - S0) % 8
        return ring - 1 + (2 if (a.th and 1 <= rel <= ring) else 0)
    def publish():
        e(f"    v_add_u32 v{vOWN}, 1, v{vOWN}")
        e(f"    buffer_store_byte v{vOWN}, v{vDO}, {sr(SRD_D,4)}, 0 offen")
        e(f"    buffer_load_dword v{vDT}, v{vLN}, {sr(SRD_D,4)}, 0 offen nt")
    def decide():
        for b in range(4):
            e(f"    v_cmp_ge_u32_sdwa s[{56+2*b}:{57+2*b}], v{vDT}, v{vOWN} src0_sel:BYTE_{b} src1_sel:DWORD")
        for b in range(4):
            e(f"    s_bcnt1_i32_b64 s{56+2*b}, s[{56+2*b}:{57+2*b}]")
        e("    s_add_u32 s56, s56, s58")
        e("    s_add_u32 s60, s60, s62")
        e("    s_add_u32 s56, s56, s60")
        e("    s_cmp_gt_u32 s56, s53")
        e("    s_cselect_b64 vcc, -1, 0")
    def wait(boost, k=0):
        if boost and RS > R:
            lab[0] += 1
            tight = a.lo and ((k - S0) % (8 // a.lo) == a.lopos)
            e(f"    s_cbranch_vccnz L_b{lab[0]}")
            e(f"    s_waitcnt vmcnt({cnt_for(R-1 if tight else R, k)})")
            e(f"L_b{lab[0]}:")
            safe = 1 if (a.th and (k - S0) % 8 == 4) else 0
            e(f"    s_waitcnt vmcnt({cnt_for(a.r2, k) - safe})")
        else:
            e(f"    s_waitcnt vmcnt({R-1})")

    R0 = min(a.r0 or R, S0)
    QAT = 4
    QB = STB + 1024
    assert QB % 128 == 0 and QB + 4 * SL <= TOG
    def q_srd():
        e(f"    s_add_u32 s{SRD_Q}, s{sQ}, s{sT1}")
        e(f"    s_addc_u32 s{SRD_Q+1}, s{sQ+1}, 0")
        e(f"    s_mov_b32 s{SRD_Q+2}, 4096")
        e(f"    s_mov_b32 s{SRD_Q+3}, 0x00020000")
    def setup_rest():
        e(f"    s_add_u32 s{sVB}, s{sVC}, s{sT0}")
        e(f"    s_addc_u32 s{sVB+1}, s{sVC+1}, 0")
        e(f"    s_mov_b32 s{sREM}, s{sNB}")
        if not a.qlds:
            q_srd()
            e(f"    v_lshlrev_b32 v{vAL}, 8, v{vC4}")
            e(f"    v_lshl_add_u32 v{vAL}, v{vG4}, 4, v{vAL}")
            for m in range(4):
                e(f"    buffer_load_dwordx4 {r(vQ+4*m,4)}, v{vAL}, {sr(SRD_Q,4)}, 0 offen offset:{64*m}{a.qc}")
    if a.qlds:
        e(f"    s_cmp_lg_u32 s{sW}, {NW}")
        e("    s_cbranch_scc1 L_noq")
        q_srd()
        for j in range(4):
            e(f"    s_mov_b32 m0, {QB + j*SL - 1024*j}")
            e("    s_nop 0")
            e(f"    buffer_load_dwordx4 v{vSRC}, {sr(SRD_Q,4)}, 0 offen offset:{1024*j}{cache} lds")
        e(f"    s_mov_b32 m0, s{sLW}")
        e("    s_nop 0")
        e("L_noq:")
    for s in range(R0):
        if s == QAT: setup_rest()
        if s > 0:
            pre_load(s)
            e("    s_nop 0")
        load(s, True)
    e(f"    s_mul_i32 s{sT0}, s{sW}, {HALF}")
    e(f"    v_lshrrev_b32 v{vA}, 2, v{vC4}")
    e(f"    v_mul_u32_u24 v{vKR}, {SL}, v{vA}")
    e(f"    v_and_b32 v{vB}, 3, v{vC4}")
    e(f"    v_lshl_add_u32 v{vKR}, v{vB}, 8, v{vKR}")
    e(f"    v_lshlrev_b32 v{vB}, 1, v{vB}")
    e(f"    v_xor_b32 v{vB}, v{vB}, v{vG4}")
    e(f"    v_lshl_add_u32 v{vKR}, v{vB}, 4, v{vKR}")
    e(f"    v_add_u32 v{vKR}, s{sT0}, v{vKR}")
    e(f"    v_xor_b32 v{vB}, 4, v{vB}")
    e(f"    v_lshlrev_b32 v{vB}, 4, v{vB}")
    e(f"    v_and_b32 v{vKR+1}, 0xffffff8f, v{vKR}")
    e(f"    v_or_b32 v{vKR+1}, v{vKR+1}, v{vB}")
    e(f"    v_mul_u32_u24 v{vVR}, {SL}, v{vG4}")
    e(f"    v_lshl_add_u32 v{vVR}, v{vA}, 8, v{vVR}")
    e(f"    v_and_b32 v{vB}, 3, v{vC4}")
    e(f"    v_lshl_add_u32 v{vVR}, v{vB}, 3, v{vVR}")
    e(f"    v_lshl_add_u32 v{vVR}, v{vA}, 5, v{vVR}")
    e(f"    v_add_u32 v{vVR}, s{sT0}, v{vVR}")
    e(f"    s_and_b32 s{sTOG}, s{sNB}, 1")
    e(f"    s_lshl_b32 s{sTOG}, s{sTOG}, 16")
    e(f"    v_xor_b32 v{vVR}, s{sTOG}, v{vVR}")
    for k in range(1, 4):
        e(f"    v_xor_b32 v{vVR+k}, {32*k}, v{vVR}")
    c = (128 ** -0.5) * math.log2(math.e)
    e(f"    s_mov_b32 s{sC}, {f32bits(c):#x}")
    e(f"    s_lshl_b32 s{sT0}, s{sW}, 3")
    e(f"    s_add_u32 s{sT0}, s{sT0}, {STB}")
    e(f"    v_lshl_add_u32 v{vSA}, v{vC4}, 6, s{sT0}")
    e(f"    s_mul_i32 s{sT0}, s{sW}, {OW}")
    e(f"    s_add_u32 s{sT0}, s{sT0}, {OBASE}")
    e(f"    v_mul_u32_u24 v{vWA}, {OSTR}, v{vC4}")
    e(f"    v_lshl_add_u32 v{vWA}, v{vG4}, 4, v{vWA}")
    e(f"    v_add_u32 v{vWA}, s{sT0}, v{vWA}")
    e(f"    v_lshrrev_b32 v{vA}, 4, v0")
    e(f"    v_mul_u32_u24 v{vRA}, {OSTR}, v{vA}")
    e(f"    v_lshl_add_u32 v{vRA}, v{vC4}, 5, v{vRA}")
    e(f"    v_add_u32 v{vRA}, {OBASE}, v{vRA}")
    e(f"    s_add_u32 s{SRD_O}, s{sOUT}, s{sT1}")
    e(f"    s_addc_u32 s{SRD_O+1}, s{sOUT+1}, 0")
    e(f"    s_mov_b32 s{SRD_O+2}, 4096")
    e(f"    s_mov_b32 s{SRD_O+3}, 0x00020000")
    e(f"    v_mov_b32 v{vM}, 0xff800000")
    e(f"    v_mov_b32 v{vL}, 0")
    for i in range(8): e(f"    v_mov_b32 v{vBI+i}, 0")
    e(f"    s_mov_b32 s{sIDX}, 0")
    e(f"    s_mov_b32 s{sCNT}, s{sNB}")
    e("    s_mov_b64 vcc, 0")
    if a.tau: e(f"    s_mov_b32 s54, {a.t0 * 16}")
    if a.pe:
        e("    s_getreg_b32 s53, hwreg(HW_REG_XCC_ID, 0, 1)")
        e(f"    s_lshr_b32 s54, s2, 3")
        e(f"    s_mul_i32 s54, s54, {a.pe}")
        e(f"    s_lshr_b32 s54, s54, 5")
        e("    s_add_u32 s54, s54, 1")
        e("    s_cmp_eq_u32 s53, 0")
        e(f"    s_cselect_b32 s53, {a.pe}, {a.po}")
        e(f"    s_cselect_b32 s54, s54, {a.po}")
    if a.n2e >= 0:
        e("    s_getreg_b32 s52, hwreg(HW_REG_XCC_ID, 0, 1)")
        e("    s_cmp_eq_u32 s52, 0")
        e(f"    s_cselect_b32 s52, {a.n2e}, {a.n2}")
    e(f"    s_cmp_lg_u32 s{sW}, {NW}")
    e("    s_cbranch_scc1 L_nomask")
    e(f"    s_lshr_b32 s{sT0}, s2, 5")
    e(f"    s_lshl_b32 s{sT0}, s{sT0}, 9")
    e(f"    s_add_u32 s{SRD_M}, s{sMK}, s{sT0}")
    e(f"    s_addc_u32 s{SRD_M+1}, s{sMK+1}, 0")
    e(f"    s_mov_b32 s{SRD_M+2}, 512")
    e(f"    s_mov_b32 s{SRD_M+3}, 0x00020000")
    e(f"    v_lshlrev_b32 v{vA}, 5, v{vC4}")
    e(f"    v_lshl_add_u32 v{vA}, v{vG4}, 3, v{vA}")
    e(f"    buffer_load_dwordx2 {r(vP,2)}, v{vA}, {sr(SRD_M,4)}, 0 offen")
    big = 1e9 * math.sqrt(128.0)
    e(f"    s_mov_b32 s{sT0}, {f32bits(big):#x}")
    for i in range(4): e(f"    v_mov_b32 v{vBI+4+i}, 0xff800000")
    if a.qlds:
        e(f"    s_waitcnt vmcnt({R0 + 1})")
        e("    s_barrier")
    e("    s_waitcnt vmcnt(0)")
    e(f"    v_lshlrev_b32 v{vBI}, 16, v{vP}")
    e(f"    v_and_b32 v{vBI+1}, 0xffff0000, v{vP}")
    e(f"    v_lshlrev_b32 v{vBI+2}, 16, v{vP+1}")
    e(f"    v_and_b32 v{vBI+3}, 0xffff0000, v{vP+1}")
    for i in range(4): e(f"    v_fma_f32 v{vBI+i}, v{vBI+i}, s{sT0}, -s{sT0}")
    e("L_nomask:")
    if a.th:
        assert RS <= 6 and not a.stamp
        e(f"    s_mov_b32 s{SRD_D}, s18")
        e(f"    s_mov_b32 s{SRD_D+1}, s19")
        e(f"    s_mov_b32 s{SRD_D+2}, 256")
        e(f"    s_mov_b32 s{SRD_D+3}, 0x00020000")
        e(f"    v_and_b32 v{vLN}, 63, v0")
        e(f"    v_lshlrev_b32 v{vDO}, 8, v{vLN}")
        e(f"    v_lshlrev_b32 v{vLN}, 2, v{vLN}")
        e(f"    s_lshr_b32 s{sT0}, s{sW}, {0 if a.st0 else 2}")
        e(f"    s_lshl_b32 s{sT0}, s{sT0}, 8")
        if a.ld0:
            e(f"    v_lshlrev_b32 v{vLN}, 2, v0")
        e(f"    s_add_u32 s{sT0}, s{sT0}, s2")
        e(f"    v_add_u32 v{vDO}, s{sT0}, v{vDO}")
        e(f"    v_mov_b32 v{vOWN}, 0")
        if a.the != a.th:
            e("    s_getreg_b32 s53, hwreg(HW_REG_XCC_ID, 0, 1)")
            e("    s_cmp_eq_u32 s53, 0")
            e(f"    s_cselect_b32 s53, {a.the}, {a.th}")
        else:
            e(f"    s_mov_b32 s53, {a.th}")

    def xlane_reduce(op, va, vb):
        e(f"    v_mov_b32 v{vb}, v{va}")
        e("    s_nop 1")
        e(f"    v_permlane32_swap_b32 v{va}, v{vb}")
        e(f"    {op} v{va}, v{va}, v{vb}")
        e(f"    v_mov_b32 v{vb}, v{va}")
        e("    s_nop 1")
        e(f"    v_permlane16_swap_b32 v{va}, v{vb}")
        e(f"    {op} v{va}, v{va}, v{vb}")

    for s in range(R0, S0):
        pre_load(s)
        extra = 4 if (s - R < QAT and not a.qlds) else 0
        e(f"    s_waitcnt vmcnt({R - 1 + extra})")
        load(s, True)

    if a.qlds:
        e(f"    s_mul_i32 s{sT0}, s{sW}, {HALF}")
        e(f"    s_sub_u32 s{sT0}, {QB}, s{sT0}")
        e(f"    v_add_u32 v{vA}, s{sT0}, v{vKR}")
        e(f"    v_add_u32 v{vB}, s{sT0}, v{vKR+1}")
        e(f"    s_cmp_eq_u32 s{sW}, {NW}")
        e("    s_cbranch_scc1 L_nobar0")
        e("    s_barrier")
        e("L_nobar0:")
        for m in range(4):
            e(f"    ds_read_b128 {r(vQ+4*m,4)}, v{(vA, vB)[m&1]} offset:{128*(m>>1)}")
    def trace(lane):
        e("    s_memrealtime s[60:61]")
        e("    s_waitcnt lgkmcnt(0)")
        e(f"    v_writelane_b32 v{vTR}, s60, {lane}")
    def trace_dyn():
        e("    s_memrealtime s[60:61]")
        e("    s_lshr_b32 s62, s55, 1")
        e("    s_waitcnt lgkmcnt(0)")
        e("    s_mov_b32 m0, s62")
        e(f"    v_writelane_b32 v{vTR}, s60, m0")
        e("    s_add_u32 s55, s55, 1")
    if a.stamp:
        e(f"    v_mov_b32 v{vTR}, 0")
        e(f"    v_writelane_b32 v{vTR}, s56, 0")
        e("    s_getreg_b32 s60, hwreg(HW_REG_XCC_ID)")
        e(f"    v_writelane_b32 v{vTR}, s60, 38")
        e("    s_getreg_b32 s60, hwreg(HW_REG_HW_ID)")
        e(f"    v_writelane_b32 v{vTR}, s60, 39")
        trace(1)
        e("    s_mov_b32 s55, 5")

    if a.dbg:
        e("    s_memrealtime s[58:59]")
        e("    s_waitcnt lgkmcnt(0)")
    if a.absref >= 0:
        e(f"    s_cmp_lg_u32 s2, {a.absref}")
        e("    s_cbranch_scc1 L_noref")
        e(f"    s_cmp_lg_u32 s{sW}, {NW}")
        e("    s_cbranch_scc1 L_noref")
        e(f"    v_mov_b32 v{vA}, 128")
        e(f"    v_mov_b32 v{vB}, s56")
        e(f"    global_store_dword v{vA}, v{vB}, s[18:19] sc0 sc1")
        e("    s_waitcnt vmcnt(0)")
        e("L_noref:")
    def kread(t):
        for m in range(4):
            e(f"    ds_read_b128 {r(vKF+4*m,4)}, v{vKR+(m&1)} offset:{t*4*SL + 128*(m>>1)}")
        if t == 1:
            for k in range(2): e(f"    v_xor_b32 v{vKR+k}, {TOG}, v{vKR+k}")
    def qk(t):
        for m in range(4):
            e(f"    s_waitcnt lgkmcnt({3-m})")
            cc = r(vBI+4*t, 4) if m == 0 else r(vS+4*t, 4)
            e(f"    v_mfma_f32_16x16x32_bf16 {r(vS+4*t,4)}, {r(vKF+4*m,4)}, {r(vQ+4*m,4)}, {cc}")
    def sm1():
        e(f"    v_max3_f32 v{vA}, v{vS}, v{vS+1}, v{vS+2}")
        e("    s_nop 3")
        e(f"    v_max3_f32 v{vB}, v{vS+3}, v{vS+4}, v{vS+5}")
        e(f"    v_max3_f32 v{vA}, v{vA}, v{vS+6}, v{vS+7}")
        e(f"    v_max_f32 v{vA}, v{vA}, v{vB}")
        xlane_reduce("v_max_f32", vA, vB)
        e(f"    v_mul_f32 v{vA}, s{sC}, v{vA}")
        e(f"    v_max_f32 v{vA}, v{vA}, v{vM}")
        e(f"    v_sub_f32 v{vAL}, v{vM}, v{vA}")
        e(f"    v_mov_b32 v{vM}, v{vA}")
        e(f"    v_exp_f32 v{vAL}, v{vAL}")
    def sm2():
        for i in range(8): e(f"    v_fma_f32 v{vS+i}, v{vS+i}, s{sC}, -v{vM}")
        for i in range(8): e(f"    v_exp_f32 v{vS+i}, v{vS+i}")
        e(f"    v_add_f32 v{vA}, v{vS}, v{vS+1}")
        e(f"    v_add_f32 v{vB}, v{vS+2}, v{vS+3}")
        e(f"    v_fma_f32 v{vL}, v{vL}, v{vAL}, v{vA}")
        e(f"    v_add_f32 v{vA}, v{vS+4}, v{vS+5}")
        e(f"    v_add_f32 v{vL}, v{vL}, v{vB}")
        e(f"    v_add_f32 v{vB}, v{vS+6}, v{vS+7}")
        e(f"    v_add_f32 v{vL}, v{vL}, v{vA}")
        for p in range(4): e(f"    v_cvt_pk_bf16_f32 v{vP+p}, v{vS+2*p}, v{vS+2*p+1}")
        e(f"    v_add_f32 v{vL}, v{vL}, v{vB}")
        e(f"    s_set_gpr_idx_on s{sIDX}, gpr_idx(DST)")
        for p in range(4): e(f"    v_mov_b32 v{vST+p}, v{vP+p}")
        e(f"    v_mov_b32 v{vST+4}, v{vAL}")
        e("    s_set_gpr_idx_off")
        e(f"    s_add_u32 s{sIDX}, s{sIDX}, 5")
    t1 = {3: [lambda: kread(0)], 4: [lambda: qk(0)], 7: [lambda: kread(1)], 8: [lambda: qk(1)], 9: [sm1], 10: [sm2]}
    if a.tau:
        t1[3] = [pace_issue] + t1[3]; t1[5] = [pace]
    if a.th:
        t1[3] = [publish] + t1[3]; t1[10] = t1[10] + [decide]
    if a.align: e(f"    .p2align {a.align}")
    e("L_p1:")
    if a.stamp: trace_dyn()
    for s in range(S0, S0 + 8):
        pre_load(s)
        wait(bool(a.pe or a.tau or a.th), s)
        load(s, True)
        for t in t1.get(s - RS, []): t()
    if a.pe: duty()
    e(f"    s_sub_u32 s{sCNT}, s{sCNT}, 1")
    e(f"    s_cmp_lg_u32 s{sCNT}, 0")
    e("    s_cbranch_scc1 L_p1")

    xlane_reduce("v_add_f32", vL, vB)
    e(f"    ds_write_b64 v{vSA}, {r(vM,2)}")
    for i in range(32): e(f"    v_mov_b32 v{vO+i}, 0")
    e(f"    v_lshrrev_b32 v{vA}, 4, v0")
    e(f"    v_lshlrev_b32 v{vA}, 6, v{vA}")
    e(f"    s_mov_b32 s{sIDX}, 0")
    e(f"    s_mov_b32 s{sCNT}, s{sNB}")
    e(f"    s_cmp_eq_u32 s{sW}, {NW}")
    e("    s_cselect_b64 exec, 0, -1")
    e("    s_waitcnt lgkmcnt(0)")
    e("    s_cbranch_scc1 L_nobar1")
    e("    s_barrier")
    e("L_nobar1:")
    ST = vVT
    for i in range(3):
        e(f"    ds_read_b128 {r(ST+4*i,4)}, v{vA} offset:{STB + 16*i}")
    if a.premerge:
        for x in range(2):
            e(f"    ds_read_b128 {r(ST+16+4*x,4)}, v{vRA} offset:{NW*OW + 16*x}")
    e("    s_waitcnt lgkmcnt(0)")
    e(f"    v_max3_f32 v{vA}, v{ST}, v{ST+2}, v{ST+4}")
    e(f"    v_max3_f32 v{vA}, v{vA}, v{ST+6}, v{ST+8}")
    for w in range(NP): e(f"    v_sub_f32 v{vF+w}, v{ST+2*w}, v{vA}")
    for w in range(NP): e(f"    v_exp_f32 v{vF+w}, v{vF+w}")
    e("    s_nop 0")
    e(f"    v_mul_f32 v{vB}, v{vF}, v{ST+1}")
    for w in range(1, NP): e(f"    v_fma_f32 v{vB}, v{vF+w}, v{ST+2*w+1}, v{vB}")
    e(f"    v_rcp_f32 v{vB}, v{vB}")
    e("    s_nop 0")
    for w in range(NP): e(f"    v_mul_f32 v{vF+w}, v{vF+w}, v{vB}")
    if a.premerge:
        for x in range(8): e(f"    v_mul_f32 v{vAC+x}, v{ST+16+x}, v{vF+4}")
    e("    s_mov_b64 exec, -1")

    def vread(t):
        for jd in range(8):
            e(f"    ds_read_b64_tr_b16 {r(vVT+4*jd+2*t,2)}, v{vVR+(jd&3)} offset:{t*4*SL + 128*(jd>>2)}")
        if t == 1:
            for k in range(4): e(f"    v_xor_b32 v{vVR+k}, {TOG}, v{vVR+k}")
    def pfetch():
        e(f"    s_set_gpr_idx_on s{sIDX}, gpr_idx(SRC0)")
        for p in range(4): e(f"    v_mov_b32 v{vP+p}, v{vST+p}")
        e(f"    v_mov_b32 v{vAL}, v{vST+4}")
        e("    s_set_gpr_idx_off")
        e(f"    s_add_u32 s{sIDX}, s{sIDX}, 5")
        e("    s_waitcnt lgkmcnt(0)")
    def resc(half):
        for i in range(16*half, 16*half+16): e(f"    v_mul_f32 v{vO+i}, v{vO+i}, v{vAL}")
    def pv():
        if a.pe: duty()
        e(f"    s_sub_u32 s{sCNT}, s{sCNT}, 1")
        if RS > R and not a.tau and not a.th:
            e(f"    s_cmp_le_u32 s{sCNT}, s52" if a.n2e >= 0 else f"    s_cmp_le_u32 s{sCNT}, {a.n2}")
            e("    s_cselect_b64 vcc, -1, vcc" if a.pe else "    s_cselect_b64 vcc, -1, 0")
        e(f"    s_cmp_eq_u32 s{sCNT}, 0")
        for jd in range(8):
            e(f"    s_waitcnt lgkmcnt({7-jd})")
            e(f"    v_mfma_f32_16x16x32_bf16 {r(vO+4*jd,4)}, {r(vVT+4*jd,4)}, {r(vP,4)}, {r(vO+4*jd,4)}")
        e("    s_cbranch_scc1 L_epi")
    v1 = [lambda: vread(1)] + ([pv] if a.pvnow else [])
    t2 = {3: [lambda: vread(0)], 4: [pfetch], 5: [lambda: resc(0)], 6: [lambda: resc(1)], 7: v1}
    if not a.pvnow: t2[8] = [pv]
    if a.tau:
        t2[3] = [pace_issue] + t2[3]; t2[5] = [pace] + t2[5]
    def endboost():
        e(f"    s_cmp_le_u32 s{sCNT}, {a.n2}")
        e("    s_cselect_b64 vcc, -1, vcc")
    if a.th:
        t2[3] = [publish] + t2[3]; t2[10] = [decide, endboost]
    if a.align: e(f"    .p2align {a.align}")
    e("L_p2:")
    if a.stamp: trace_dyn()
    for s in range(S0, S0 + 8):
        pre_load(s)
        wait(True, s)
        load(s, False)
        for t in t2.get(s - RS, []): t()
    e("    s_branch L_p2")

    e("L_epi:")
    if a.stamp: trace(35)
    e(f"    s_cmp_eq_u32 s{sW}, {NW}")
    e(f"    v_lshlrev_b32 v{vA}, 4, v0")
    for jd in range(8):
        if jd == 0: e("    s_nop 0")
        e(f"    ds_write_b128 v{vWA}, {r(vO+4*jd,4)} offset:{64*jd}")
    e("    s_cselect_b64 exec, 0, -1")
    e("    s_waitcnt lgkmcnt(0)")
    e("    s_cbranch_scc1 L_nobar2")
    e("    s_barrier")
    e("L_nobar2:")
    if a.stamp: trace(36)
    PB = vST
    NR = NW if a.premerge else NP
    for w in range(NR):
        for x in range(2):
            e(f"    ds_read_b128 {r(PB+8*w+4*x,4)}, v{vRA} offset:{w*OW + 16*x}")
    for w in range(NR):
        e(f"    s_waitcnt lgkmcnt({2*(NR-1-w)})")
        for x in range(8):
            if w == 0 and not a.premerge: e(f"    v_mul_f32 v{vVT+x}, v{PB+x}, v{vF}")
            elif w == 0: e(f"    v_fma_f32 v{vVT+x}, v{PB+x}, v{vF}, v{vAC+x}")
            else: e(f"    v_fma_f32 v{vVT+x}, v{PB+8*w+x}, v{vF+w}, v{vVT+x}")
    for x in range(4): e(f"    v_cvt_pk_bf16_f32 v{vP+x}, v{vVT+2*x}, v{vVT+2*x+1}")
    e("    s_cbranch_scc1 L_end")
    e(f"    buffer_store_dwordx4 {r(vP,4)}, v{vA}, {sr(SRD_O,4)}, 0 offen{a.stc}")
    if a.stamp:
        e("    s_waitcnt vmcnt(0)")
        trace(37)
        e("    s_load_dwordx2 s[4:5], s[0:1], 64")
        e(f"    s_lshl_b32 s{sT0}, s2, 10")
        e(f"    v_lshlrev_b32 v{vA}, 2, v0")
        e("    s_waitcnt lgkmcnt(0)")
        e(f"    s_mov_b32 s{SRD_M}, s4")
        e(f"    s_mov_b32 s{SRD_M+1}, s5")
        e(f"    s_mov_b32 s{SRD_M+2}, 0x100000")
        e(f"    s_mov_b32 s{SRD_M+3}, 0x00020000")
        e(f"    buffer_store_dword v{vTR}, v{vA}, {sr(SRD_M,4)}, s{sT0} offen")
    if a.dbg > 1:
        if a.absref >= 0:
            e(f"    v_mov_b32 v{vA}, 128")
            e(f"    global_load_dword v{vB}, v{vA}, s[18:19] sc0 sc1")
            e("    s_waitcnt vmcnt(0)")
            e(f"    v_readfirstlane_b32 s56, v{vB}")
            e("    s_nop 3")
        e("L_hold:")
        e("    s_sleep 4")
        e("    s_memrealtime s[60:61]")
        e("    s_waitcnt lgkmcnt(0)")
        e("    s_sub_u32 s60, s60, s56")
        e(f"    s_cmp_lt_u32 s60, {a.dbg}")
        e("    s_cbranch_scc1 L_hold")
    if a.dbg:
        e("    s_waitcnt vmcnt(0)")
        e("    s_memrealtime s[60:61]")
        e("    s_cmp_ge_u32 s2, 16")
        e("    s_cbranch_scc1 L_end")
        e(f"    s_cmp_lg_u32 s{sW}, 0")
        e("    s_cbranch_scc1 L_end")
        e("    s_waitcnt lgkmcnt(0)")
        e("    s_sub_u32 s60, s60, s56")
        e("    s_sub_u32 s58, s58, s56")
        e("    s_mul_i32 s58, s58, 100000")
        e("    s_add_u32 s60, s60, s58")
        e(f"    s_mov_b32 s{SRD_M}, s18")
        e(f"    s_mov_b32 s{SRD_M+1}, s19")
        e(f"    s_mov_b32 s{SRD_M+2}, 256")
        e(f"    s_mov_b32 s{SRD_M+3}, 0x00020000")
        e("    s_mov_b64 exec, 1")
        e(f"    v_mov_b32 v{vB}, s60")
        e(f"    s_lshl_b32 s{sT0}, s2, 2")
        e(f"    v_mov_b32 v{vA}, s{sT0}")
        e(f"    buffer_store_dword v{vB}, v{vA}, {sr(SRD_M,4)}, 0 offen")
    e("L_end:")
    e("    s_endpgm")
    e('.section .rodata,"a"')
    e(".p2align 6")
    e(f".amdhsa_kernel {NAME}_kernel")
    e(f"  .amdhsa_next_free_vgpr {NV}")
    e("  .amdhsa_next_free_sgpr 64")
    e(f"  .amdhsa_accum_offset {NV}")
    e("  .amdhsa_group_segment_fixed_size 0")
    e("  .amdhsa_kernarg_size 72")
    e("  .amdhsa_user_sgpr_count 2")
    e("  .amdhsa_user_sgpr_kernarg_segment_ptr 1")
    e("  .amdhsa_system_sgpr_workgroup_id_x 1")
    e(".end_amdhsa_kernel")
    return "\n".join(L) + "\n"

def parser():
    ap = argparse.ArgumentParser()
    ap.add_argument("--r", type=int, default=5)
    ap.add_argument("--r0", type=int, default=0)
    ap.add_argument("--rs", type=int, default=0)
    ap.add_argument("--r2", type=int, default=0)
    ap.add_argument("--n2", type=int, default=0)
    ap.add_argument("--n2e", type=int, default=-1)
    ap.add_argument("--pe", type=int, default=0)
    ap.add_argument("--po", type=int, default=1000)
    ap.add_argument("--tau", type=int, default=0)
    ap.add_argument("--t0", type=int, default=60)
    ap.add_argument("--lo", type=int, default=0)
    ap.add_argument("--ord", type=int, default=1)
    ap.add_argument("--qlds", type=int, default=1)
    ap.add_argument("--premerge", type=int, default=1)
    ap.add_argument("--th", type=int, default=0)
    ap.add_argument("--the", type=int, default=-1)
    ap.add_argument("--lopos", type=int, default=0)
    ap.add_argument("--st0", type=int, default=0)
    ap.add_argument("--ld0", type=int, default=0)
    ap.add_argument("--pvnow", type=int, default=1)
    ap.add_argument("--align", type=int, default=0)
    ap.add_argument("--stamp", type=int, default=0)
    ap.add_argument("--dbg", type=int, default=0)
    ap.add_argument("--absref", type=int, default=-1)
    ap.add_argument("--stc", default="")
    ap.add_argument("--qc", default="")
    ap.add_argument("-o", default="/dev/stdout")
    return ap
if __name__ == "__main__":
    a = parser().parse_args()
    if a.stc: a.stc = " " + a.stc.replace(",", " ")
    if a.qc: a.qc = " " + a.qc.replace(",", " ")
    if a.rs and not a.r2: a.r2 = a.r
    if a.the < 0: a.the = a.th
    open(a.o, "w").write(gen(a))
```

```python
import argparse, struct, math
from gen import NAME, HEADER, f32bits

def gen(a):
    NW, NP, NBLK = 4, 5, 32
    R = a.r
    RS = max(R, a.r2, a.rs)
    assert 5 <= RS <= 11
    cache = " nt"
    L = []; e = L.append
    sQ, sKC, sVC, sKT, sVT, sMK, sOUT = 4, 6, 8, 10, 12, 14, 16
    SRD, sVB, SRD_Q, SRD_O, SRD_M = 20, 24, 28, 32, 36
    sW, sO0, sO1, sCNT, sC, sREM, sIDX, sT0, sT1, sNB, sLW, sTOG = 40, 41, 42, 43, 44, 45, 46, 47, 48, 49, 50, 51
    vSRC, vKR, vM, vL, vA, vB, vAL, vWA, vRA, vSA, vVR, vP, vF = 1, 2, 4, 5, 6, 7, 8, 9, 10, 11, 12, 16, 20
    vC4, vG4, vTR = 26, 27, 29
    if a.stamp: a.premerge = 0
    vO, vVT, vST = 32, 64, 96
    class Regs(list):
        def __add__(self, i): return self[i]
    vAC = Regs([2, 3, 4, 5, 11, 25, 29, 30])
    vQ, vKF, vS, vBI = 32, 48, 64, 72
    NV = 256
    r = lambda b, n: f"v[{b}:{b+n-1}]"
    sr = lambda b, n: f"s[{b}:{b+n-1}]"
    SL = 1152
    HALF = 8 * SL
    TOG = 65536
    STB = NP * HALF
    OBASE = TOG + NP * HALF
    OSTR, OW = 528, 16 * 528
    LDS = OBASE + NP * OW
    STEP = NW * 8192
    S0 = RS + 3
    lab = [0]

    e(HEADER.rstrip())
    e(f"; @launch grid=(256,1,1) block=(320,1,1) lds={LDS}")
    e('.amdgcn_target "amdgcn-amd-amdhsa--gfx950"')
    e(".text")
    e(f".globl {NAME}_kernel")
    e(".p2align 8")
    e(f".type {NAME}_kernel,@function")
    e(f"{NAME}_kernel:")
    if a.stamp or a.dbg or a.tau: e("    s_memrealtime s[56:57]")
    e("    s_load_dwordx16 s[4:19], s[0:1], 0")
    e(f"    v_lshrrev_b32 v{vA}, 6, v0")
    e(f"    v_and_b32 v{vC4}, 15, v0")
    e(f"    v_readfirstlane_b32 s{sW}, v{vA}")
    e(f"    v_bfe_u32 v{vG4}, v0, 4, 2")
    e("    s_cmp_ge_u32 s2, 256")
    e("    s_cbranch_scc1 L_end")
    e(f"    v_lshlrev_b32 v{vA}, 1, v{vG4}")
    e(f"    v_xor_b32 v{vA}, v{vA}, v{vC4}")
    e(f"    v_lshlrev_b32 v{vA}, 4, v{vA}")
    e(f"    v_lshl_add_u32 v{vSRC}, v{vG4}, 8, v{vA}")
    e(f"    s_lshl_b32 s{sT0}, s2, 20")
    e(f"    s_lshl_b32 s{sO0}, s{sW}, 13")
    e(f"    s_lshl_b32 s{sT1}, s2, 12")
    e(f"    s_add_u32 s{sT0}, s{sT0}, s{sO0}")
    e(f"    s_sub_u32 s{SRD+2}, 0x100000, s{sO0}")
    e(f"    s_mul_i32 s{sLW}, s{sW}, {HALF}")
    e(f"    s_mov_b32 s{SRD+3}, 0x00020000")
    e(f"    s_mov_b32 s{sO0}, 0")
    e(f"    s_mov_b32 m0, s{sLW}")
    e(f"    s_cmp_eq_u32 s{sW}, {NW}")
    e(f"    s_cselect_b32 s{sT0}, s{sT1}, s{sT0}")
    e(f"    s_cselect_b32 s{SRD+2}, 4096, s{SRD+2}")
    e(f"    s_cselect_b32 s{sNB}, 1, {NBLK}")
    e("    s_waitcnt lgkmcnt(0)")
    e(f"    s_cselect_b64 {sr(sKC,2)}, {sr(sKT,2)}, {sr(sKC,2)}")
    e(f"    s_cselect_b64 {sr(sVC,2)}, {sr(sVT,2)}, {sr(sVC,2)}")
    e(f"    s_add_u32 s{SRD}, s{sKC}, s{sT0}")
    e(f"    s_addc_u32 s{SRD+1}, s{sKC+1}, 0")

    ORD = [0, 2, 1, 3, 4, 6, 5, 7] if a.ord else list(range(8))
    def pre_load(s, m0done=False):
        j = ORD[s % 8]
        if not m0done:
            e(f"    s_add_u32 m0, s{sLW}, {j*SL - 1024*(j&3)}")
    def load(s, switch):
        j = ORD[s % 8]
        so = sO0 if j < 4 else sO1
        e(f"    buffer_load_dwordx4 v{vSRC}, {sr(SRD,4)}, s{so} offen offset:{1024*(j&3)}{cache} lds")
        if j == 3:
            e(f"    s_add_u32 s{sO1}, s{sO0}, 4096")
        if j == 7:
            e(f"    s_add_u32 s{sO0}, s{sO0}, {STEP}")
            e(f"    s_xor_b32 s{sLW}, s{sLW}, {TOG}")
            if switch:
                e(f"    s_sub_u32 s{sREM}, s{sREM}, 1")
                e(f"    s_cmp_eq_u32 s{sREM}, 0")
                e(f"    s_cselect_b64 {sr(SRD,2)}, {sr(sVB,2)}, {sr(SRD,2)}")
                e(f"    s_cselect_b32 s{sO0}, 0, s{sO0}")
    def duty():
        e("    s_sub_u32 s54, s54, 1")
        e("    s_cmp_eq_u32 s54, 0")
        e("    s_cselect_b64 vcc, -1, 0")
        e("    s_cselect_b32 s54, s53, s54")
    def pace_issue():
        e("    s_memrealtime s[60:61]")
    def pace():
        e(f"    s_add_u32 s54, s54, {a.tau}")
        e("    s_lshr_b32 s53, s54, 4")
        e("    s_sub_u32 s62, s60, s56")
        e("    s_cmp_gt_u32 s62, s53")
        e("    s_cselect_b64 vcc, -1, 0")
    SRD_D, vDO, vDT, vOWN, vLN = 36, 31, 26, 27, (0 if False else 28)
    def cnt_for(ring, k):
        rel = (k - S0) % 8
        return ring - 1 + (2 if (a.th and 1 <= rel <= ring) else 0)
    stubs = []
    def publish():
        e(f"    v_add_u32 v{vOWN}, 1, v{vOWN}")
        e(f"    buffer_store_byte v{vOWN}, v{vDO}, {sr(SRD_D,4)}, 0 offen")
        e(f"    buffer_load_ubyte v{vDT}, v{vLN}, {sr(SRD_D,4)}, 0 offen nt")
    def ground():
        if not a.gp: return
        n = len(stubs); stubs.append(n)
        e("    s_sub_u32 s54, s54, 1")
        e("    s_cmp_eq_u32 s54, 0")
        e(f"    s_cbranch_scc1 L_gr{n}")
        e(f"L_grb{n}:")
    def decide():
        e(f"    v_cmp_ge_u32 vcc, v{vDT}, v{vOWN}")
        if a.gp:
            e(f"    v_readlane_b32 s57, v{vDT}, 32")
            e("    s_bcnt1_i32_b32 s56, vcc_lo")
            e("    s_xor_b32 s57, s57, s53")
            e("    s_cmp_gt_u32 s56, s57")
        else:
            e("    s_bcnt1_i32_b64 s56, vcc")
            e("    s_cmp_gt_u32 s56, s53")
        e("    s_cselect_b64 vcc, -1, 0")
    def wait(boost, k=0):
        if boost and RS > R:
            lab[0] += 1
            tight = a.lo and ((k - S0) % (8 // a.lo) == a.lopos)
            e(f"    s_cbranch_vccnz L_b{lab[0]}")
            e(f"    s_waitcnt vmcnt({cnt_for(R-1 if tight else R, k)})")
            e(f"L_b{lab[0]}:")
            safe = 1 if (a.th and (k - S0) % 8 == 4) else 0
            e(f"    s_waitcnt vmcnt({cnt_for(a.r2, k) - safe})")
        else:
            e(f"    s_waitcnt vmcnt({R-1})")

    R0 = min(a.r0 or R, S0)
    QAT = 4
    QB = STB + 1024
    assert QB % 128 == 0 and QB + 4 * SL <= TOG
    def q_srd():
        e(f"    s_add_u32 s{SRD_Q}, s{sQ}, s{sT1}")
        e(f"    s_addc_u32 s{SRD_Q+1}, s{sQ+1}, 0")
        e(f"    s_mov_b32 s{SRD_Q+2}, 4096")
        e(f"    s_mov_b32 s{SRD_Q+3}, 0x00020000")
    def setup_rest():
        e(f"    s_add_u32 s{sVB}, s{sVC}, s{sT0}")
        e(f"    s_addc_u32 s{sVB+1}, s{sVC+1}, 0")
        e(f"    s_mov_b32 s{sREM}, s{sNB}")
        if a.gp: e("    s_load_dwordx2 s[26:27], s[0:1], 64")
        if a.vtouch:
            e(f"    v_mov_b32 v{vB}, 0")
            e(f"    global_load_dword v{vST}, v{vB}, {sr(sVB,2)} nt")
        if not a.qlds:
            q_srd()
            e(f"    v_lshlrev_b32 v{vAL}, 8, v{vC4}")
            e(f"    v_lshl_add_u32 v{vAL}, v{vG4}, 4, v{vAL}")
            for m in range(4):
                e(f"    buffer_load_dwordx4 {r(vQ+4*m,4)}, v{vAL}, {sr(SRD_Q,4)}, 0 offen offset:{64*m}{a.qc}")
    if a.qlds:
        e(f"    s_cmp_lg_u32 s{sW}, {NW}")
        e("    s_cbranch_scc1 L_noq")
        q_srd()
        for j in range(4):
            e(f"    s_mov_b32 m0, {QB + j*SL - 1024*j}")
            e("    s_nop 0")
            e(f"    buffer_load_dwordx4 v{vSRC}, {sr(SRD_Q,4)}, 0 offen offset:{1024*j}{cache} lds")
        e(f"    s_mov_b32 m0, s{sLW}")
        e("    s_nop 0")
        e("L_noq:")
    for s in range(R0):
        if s == QAT: setup_rest()
        if s > 0:
            pre_load(s)
            e("    s_nop 0")
        load(s, True)
    e(f"    s_mul_i32 s{sT0}, s{sW}, {HALF}")
    e(f"    v_lshrrev_b32 v{vA}, 2, v{vC4}")
    e(f"    v_mul_u32_u24 v{vKR}, {SL}, v{vA}")
    e(f"    v_and_b32 v{vB}, 3, v{vC4}")
    e(f"    v_lshl_add_u32 v{vKR}, v{vB}, 8, v{vKR}")
    e(f"    v_lshlrev_b32 v{vB}, 1, v{vB}")
    e(f"    v_xor_b32 v{vB}, v{vB}, v{vG4}")
    e(f"    v_lshl_add_u32 v{vKR}, v{vB}, 4, v{vKR}")
    e(f"    v_add_u32 v{vKR}, s{sT0}, v{vKR}")
    e(f"    v_xor_b32 v{vB}, 4, v{vB}")
    e(f"    v_lshlrev_b32 v{vB}, 4, v{vB}")
    e(f"    v_and_b32 v{vKR+1}, 0xffffff8f, v{vKR}")
    e(f"    v_or_b32 v{vKR+1}, v{vKR+1}, v{vB}")
    e(f"    v_mul_u32_u24 v{vVR}, {SL}, v{vG4}")
    e(f"    v_lshl_add_u32 v{vVR}, v{vA}, 8, v{vVR}")
    e(f"    v_and_b32 v{vB}, 3, v{vC4}")
    e(f"    v_lshl_add_u32 v{vVR}, v{vB}, 3, v{vVR}")
    e(f"    v_lshl_add_u32 v{vVR}, v{vA}, 5, v{vVR}")
    e(f"    v_add_u32 v{vVR}, s{sT0}, v{vVR}")
    e(f"    s_and_b32 s{sTOG}, s{sNB}, 1")
    e(f"    s_lshl_b32 s{sTOG}, s{sTOG}, 16")
    e(f"    v_xor_b32 v{vVR}, s{sTOG}, v{vVR}")
    for k in range(1, 4):
        e(f"    v_xor_b32 v{vVR+k}, {32*k}, v{vVR}")
    c = (128 ** -0.5) * math.log2(math.e)
    e(f"    s_mov_b32 s{sC}, {f32bits(c):#x}")
    e(f"    s_lshl_b32 s{sT0}, s{sW}, 3")
    e(f"    s_add_u32 s{sT0}, s{sT0}, {STB}")
    e(f"    v_lshl_add_u32 v{vSA}, v{vC4}, 6, s{sT0}")
    e(f"    s_mul_i32 s{sT0}, s{sW}, {OW}")
    e(f"    s_add_u32 s{sT0}, s{sT0}, {OBASE}")
    e(f"    v_mul_u32_u24 v{vWA}, {OSTR}, v{vC4}")
    e(f"    v_lshl_add_u32 v{vWA}, v{vG4}, 4, v{vWA}")
    e(f"    v_add_u32 v{vWA}, s{sT0}, v{vWA}")
    e(f"    v_lshrrev_b32 v{vA}, 4, v0")
    e(f"    v_mul_u32_u24 v{vRA}, {OSTR}, v{vA}")
    e(f"    v_lshl_add_u32 v{vRA}, v{vC4}, 5, v{vRA}")
    e(f"    v_add_u32 v{vRA}, {OBASE}, v{vRA}")
    e(f"    s_add_u32 s{SRD_O}, s{sOUT}, s{sT1}")
    e(f"    s_addc_u32 s{SRD_O+1}, s{sOUT+1}, 0")
    e(f"    s_mov_b32 s{SRD_O+2}, 4096")
    e(f"    s_mov_b32 s{SRD_O+3}, 0x00020000")
    e(f"    v_mov_b32 v{vM}, 0xff800000")
    e(f"    v_mov_b32 v{vL}, 0")
    for i in range(8): e(f"    v_mov_b32 v{vBI+i}, 0")
    e(f"    s_mov_b32 s{sIDX}, 0")
    e(f"    s_mov_b32 s{sCNT}, s{sNB}")
    e("    s_mov_b64 vcc, -1" if a.hi0 else "    s_mov_b64 vcc, 0")
    if a.tau: e(f"    s_mov_b32 s54, {a.t0 * 16}")
    if a.pe:
        e("    s_getreg_b32 s53, hwreg(HW_REG_XCC_ID, 0, 1)")
        e(f"    s_lshr_b32 s54, s2, 3")
        e(f"    s_mul_i32 s54, s54, {a.pe}")
        e(f"    s_lshr_b32 s54, s54, 5")
        e("    s_add_u32 s54, s54, 1")
        e("    s_cmp_eq_u32 s53, 0")
        e(f"    s_cselect_b32 s53, {a.pe}, {a.po}")
        e(f"    s_cselect_b32 s54, s54, {a.po}")
    if a.n2e >= 0:
        e("    s_getreg_b32 s52, hwreg(HW_REG_XCC_ID, 0, 1)")
        e("    s_cmp_eq_u32 s52, 0")
        e(f"    s_cselect_b32 s52, {a.n2e}, {a.n2}")
    e(f"    s_cmp_lg_u32 s{sW}, {NW}")
    e("    s_cbranch_scc1 L_nomask")
    e(f"    s_lshr_b32 s{sT0}, s2, 5")
    e(f"    s_lshl_b32 s{sT0}, s{sT0}, 9")
    e(f"    s_add_u32 s{SRD_M}, s{sMK}, s{sT0}")
    e(f"    s_addc_u32 s{SRD_M+1}, s{sMK+1}, 0")
    e(f"    s_mov_b32 s{SRD_M+2}, 512")
    e(f"    s_mov_b32 s{SRD_M+3}, 0x00020000")
    e(f"    v_lshlrev_b32 v{vA}, 5, v{vC4}")
    e(f"    v_lshl_add_u32 v{vA}, v{vG4}, 3, v{vA}")
    e(f"    buffer_load_dwordx2 {r(vP,2)}, v{vA}, {sr(SRD_M,4)}, 0 offen")
    big = 1e9 * math.sqrt(128.0)
    e(f"    s_mov_b32 s{sT0}, {f32bits(big):#x}")
    for i in range(4): e(f"    v_mov_b32 v{vBI+4+i}, 0xff800000")
    if a.qlds:
        e(f"    s_waitcnt vmcnt({R0 + 1 + a.vtouch})")
        e("    s_barrier")
    e("    s_waitcnt vmcnt(0)")
    e(f"    v_lshlrev_b32 v{vBI}, 16, v{vP}")
    e(f"    v_and_b32 v{vBI+1}, 0xffff0000, v{vP}")
    e(f"    v_lshlrev_b32 v{vBI+2}, 16, v{vP+1}")
    e(f"    v_and_b32 v{vBI+3}, 0xffff0000, v{vP+1}")
    for i in range(4): e(f"    v_fma_f32 v{vBI+i}, v{vBI+i}, s{sT0}, -s{sT0}")
    e("L_nomask:")
    if a.th:
        assert RS <= 7
        e(f"    s_mov_b32 s{SRD_D}, s18")
        e(f"    s_mov_b32 s{SRD_D+1}, s19")
        e(f"    s_mov_b32 s{SRD_D+2}, {36 if a.gp else 32}")
        e(f"    s_mov_b32 s{SRD_D+3}, 0x00020000")
        e(f"    v_and_b32 v{vLN}, 63, v0")
        e(f"    s_lshr_b32 s{sT0}, s2, 3")
        if a.pubw >= 0:
            e(f"    v_xor_b32 v{vDO}, {64*a.pubw}, v0")
            e(f"    v_lshl_add_u32 v{vDO}, v{vDO}, 6, s{sT0}")
        else:
            e(f"    v_and_b32 v{vDO}, 0x13f, v0")
            e(f"    v_lshl_add_u32 v{vDO}, v{vDO}, 6, s{sT0}")
        e(f"    v_mov_b32 v{vDT}, 0")
        if a.gp:
            e(f"    s_mul_i32 s52, s{sT0}, {a.gstride}")
            e(f"    s_mul_i32 s54, s{sT0}, {a.gp}")
            e(f"    s_add_u32 s54, s54, {a.g0}")
            e("    s_waitcnt lgkmcnt(0)")
            e("    s_add_u32 s26, s26, s52")
            e("    s_addc_u32 s27, s27, 0")
            if a.stamp: e("    s_add_u32 s26, s26, 0x200000\n    s_addc_u32 s27, s27, 0")
            e(f"    s_cmp_lt_u32 s{sT0}, {a.gn}")
            e("    s_cselect_b32 s54, s54, 0")
            e(f"    s_cmp_eq_u32 s{sW}, {a.gw}")
            e("    s_cselect_b32 s54, s54, 0")
            e("    s_cbranch_scc0 L_nosnap")
            e("    s_load_dword s52, s[26:27], 0x0")
            e("L_nosnap:")
        e(f"    v_mov_b32 v{vOWN}, 1")
        if a.the != a.th:
            e("    s_getreg_b32 s53, hwreg(HW_REG_XCC_ID, 0, 1)")
            e("    s_cmp_eq_u32 s53, 0")
            e(f"    s_cselect_b32 s53, {a.the}, {a.th}")
        else:
            e(f"    s_mov_b32 s53, {a.th}")

    def xlane_reduce(op, va, vb):
        e(f"    v_mov_b32 v{vb}, v{va}")
        e("    s_nop 1")
        e(f"    v_permlane32_swap_b32 v{va}, v{vb}")
        e(f"    {op} v{va}, v{va}, v{vb}")
        e(f"    v_mov_b32 v{vb}, v{va}")
        e("    s_nop 1")
        e(f"    v_permlane16_swap_b32 v{va}, v{vb}")
        e(f"    {op} v{va}, v{va}, v{vb}")

    for s in range(R0, S0):
        pre_load(s)
        extra = 4 if (s - R < QAT and not a.qlds) else (1 if (s - R < QAT and a.vtouch) else 0)
        e(f"    s_waitcnt vmcnt({R - 1 + extra})")
        load(s, True)

    if a.qlds:
        e(f"    s_mul_i32 s{sT0}, s{sW}, {HALF}")
        e(f"    s_sub_u32 s{sT0}, {QB}, s{sT0}")
        e(f"    v_add_u32 v{vA}, s{sT0}, v{vKR}")
        e(f"    v_add_u32 v{vB}, s{sT0}, v{vKR+1}")
        e(f"    s_cmp_eq_u32 s{sW}, {NW}")
        e("    s_cbranch_scc1 L_nobar0")
        e("    s_barrier")
        e("L_nobar0:")
        for m in range(4):
            e(f"    ds_read_b128 {r(vQ+4*m,4)}, v{(vA, vB)[m&1]} offset:{128*(m>>1)}")
    def trace(lane):
        e("    s_memrealtime s[60:61]")
        e("    s_waitcnt lgkmcnt(0)")
        e(f"    v_writelane_b32 v{vTR}, s60, {lane}")
    def trace_dyn():
        e("    s_memrealtime s[60:61]")
        e("    s_lshr_b32 s62, s55, 1")
        e("    s_waitcnt lgkmcnt(0)")
        e("    s_mov_b32 m0, s62")
        e(f"    v_writelane_b32 v{vTR}, s60, m0")
        e("    s_add_u32 s55, s55, 1")
    if a.stamp:
        e(f"    v_mov_b32 v{vTR}, 0")
        e(f"    v_writelane_b32 v{vTR}, s56, 0")
        e("    s_getreg_b32 s60, hwreg(HW_REG_XCC_ID)")
        e(f"    v_writelane_b32 v{vTR}, s60, 38")
        e("    s_getreg_b32 s60, hwreg(HW_REG_HW_ID)")
        e(f"    v_writelane_b32 v{vTR}, s60, 39")
        trace(1)
        e("    s_mov_b32 s55, 5")

    if a.dbg:
        e("    s_memrealtime s[58:59]")
        e("    s_waitcnt lgkmcnt(0)")
    if a.absref >= 0:
        e(f"    s_cmp_lg_u32 s2, {a.absref}")
        e("    s_cbranch_scc1 L_noref")
        e(f"    s_cmp_lg_u32 s{sW}, {NW}")
        e("    s_cbranch_scc1 L_noref")
        e(f"    v_mov_b32 v{vA}, 128")
        e(f"    v_mov_b32 v{vB}, s56")
        e(f"    global_store_dword v{vA}, v{vB}, s[18:19] sc0 sc1")
        e("    s_waitcnt vmcnt(0)")
        e("L_noref:")
    def kread(t):
        for m in range(4):
            e(f"    ds_read_b128 {r(vKF+4*m,4)}, v{vKR+(m&1)} offset:{t*4*SL + 128*(m>>1)}")
        if t == 1:
            for k in range(2): e(f"    v_xor_b32 v{vKR+k}, {TOG}, v{vKR+k}")
    def qk(t):
        for m in range(4):
            e(f"    s_waitcnt lgkmcnt({3-m})")
            cc = r(vBI+4*t, 4) if m == 0 else r(vS+4*t, 4)
            e(f"    v_mfma_f32_16x16x32_bf16 {r(vS+4*t,4)}, {r(vKF+4*m,4)}, {r(vQ+4*m,4)}, {cc}")
    def sm1():
        e(f"    v_max3_f32 v{vA}, v{vS}, v{vS+1}, v{vS+2}")
        e("    s_nop 3")
        e(f"    v_max3_f32 v{vB}, v{vS+3}, v{vS+4}, v{vS+5}")
        e(f"    v_max3_f32 v{vA}, v{vA}, v{vS+6}, v{vS+7}")
        e(f"    v_max_f32 v{vA}, v{vA}, v{vB}")
        xlane_reduce("v_max_f32", vA, vB)
        e(f"    v_mul_f32 v{vA}, s{sC}, v{vA}")
        e(f"    v_max_f32 v{vA}, v{vA}, v{vM}")
        e(f"    v_sub_f32 v{vAL}, v{vM}, v{vA}")
        e(f"    v_mov_b32 v{vM}, v{vA}")
        e(f"    v_exp_f32 v{vAL}, v{vAL}")
    def sm2():
        for i in range(8): e(f"    v_fma_f32 v{vS+i}, v{vS+i}, s{sC}, -v{vM}")
        for i in range(8): e(f"    v_exp_f32 v{vS+i}, v{vS+i}")
        e(f"    v_add_f32 v{vA}, v{vS}, v{vS+1}")
        e(f"    v_add_f32 v{vB}, v{vS+2}, v{vS+3}")
        e(f"    v_fma_f32 v{vL}, v{vL}, v{vAL}, v{vA}")
        e(f"    v_add_f32 v{vA}, v{vS+4}, v{vS+5}")
        e(f"    v_add_f32 v{vL}, v{vL}, v{vB}")
        e(f"    v_add_f32 v{vB}, v{vS+6}, v{vS+7}")
        e(f"    v_add_f32 v{vL}, v{vL}, v{vA}")
        for p in range(4): e(f"    v_cvt_pk_bf16_f32 v{vP+p}, v{vS+2*p}, v{vS+2*p+1}")
        e(f"    v_add_f32 v{vL}, v{vL}, v{vB}")
        e(f"    s_set_gpr_idx_on s{sIDX}, gpr_idx(DST)")
        for p in range(4): e(f"    v_mov_b32 v{vST+p}, v{vP+p}")
        e(f"    v_mov_b32 v{vST+4}, v{vAL}")
        e("    s_set_gpr_idx_off")
        e(f"    s_add_u32 s{sIDX}, s{sIDX}, 5")
    t1 = {3: [lambda: kread(0)], 4: [lambda: qk(0)], 7: [lambda: kread(1)], 8: [lambda: qk(1)], 9: [sm1], 10: [sm2]}
    if a.tau:
        t1[3] = [pace_issue] + t1[3]; t1[5] = [pace]
    if a.th:
        t1[5] = [ground]
        if RS <= 6: t1[3] = [publish] + t1[3]; t1[10] = t1[10] + [decide]
        else: t1[3] = [decide, publish] + t1[3]
    if a.align: e(f"    .p2align {a.align}")
    e("L_p1:")
    if a.stamp: trace_dyn()
    for s in range(S0, S0 + 8):
        pre_load(s)
        wait(bool(a.pe or a.tau or a.th), s)
        load(s, True)
        for t in t1.get(s - RS, []): t()
    if a.pe: duty()
    e(f"    s_sub_u32 s{sCNT}, s{sCNT}, 1")
    e(f"    s_cmp_lg_u32 s{sCNT}, 0")
    e("    s_cbranch_scc1 L_p1")

    xlane_reduce("v_add_f32", vL, vB)
    e(f"    ds_write_b64 v{vSA}, {r(vM,2)}")
    for i in range(32): e(f"    v_mov_b32 v{vO+i}, 0")
    e(f"    v_lshrrev_b32 v{vA}, 4, v0")
    e(f"    v_lshlrev_b32 v{vA}, 6, v{vA}")
    e(f"    s_mov_b32 s{sIDX}, 0")
    e(f"    s_mov_b32 s{sCNT}, s{sNB}")
    e(f"    s_cmp_eq_u32 s{sW}, {NW}")
    e("    s_cselect_b64 exec, 0, -1")
    e("    s_waitcnt lgkmcnt(0)")
    e("    s_cbranch_scc1 L_nobar1")
    e("    s_barrier")
    e("L_nobar1:")
    ST = vVT
    for i in range(3):
        e(f"    ds_read_b128 {r(ST+4*i,4)}, v{vA} offset:{STB + 16*i}")
    if a.premerge:
        for x in range(2):
            e(f"    ds_read_b128 {r(ST+16+4*x,4)}, v{vRA} offset:{NW*OW + 16*x}")
    e("    s_waitcnt lgkmcnt(0)")
    e(f"    v_max3_f32 v{vA}, v{ST}, v{ST+2}, v{ST+4}")
    e(f"    v_max3_f32 v{vA}, v{vA}, v{ST+6}, v{ST+8}")
    for w in range(NP): e(f"    v_sub_f32 v{vF+w}, v{ST+2*w}, v{vA}")
    for w in range(NP): e(f"    v_exp_f32 v{vF+w}, v{vF+w}")
    e("    s_nop 0")
    e(f"    v_mul_f32 v{vB}, v{vF}, v{ST+1}")
    for w in range(1, NP): e(f"    v_fma_f32 v{vB}, v{vF+w}, v{ST+2*w+1}, v{vB}")
    e(f"    v_rcp_f32 v{vB}, v{vB}")
    e("    s_nop 0")
    for w in range(NP): e(f"    v_mul_f32 v{vF+w}, v{vF+w}, v{vB}")
    if a.premerge:
        for x in range(8): e(f"    v_mul_f32 v{vAC+x}, v{ST+16+x}, v{vF+4}")
    e("    s_mov_b64 exec, -1")

    def vread(t):
        for jd in range(8):
            e(f"    ds_read_b64_tr_b16 {r(vVT+4*jd+2*t,2)}, v{vVR+(jd&3)} offset:{t*4*SL + 128*(jd>>2)}")
        if t == 1:
            for k in range(4): e(f"    v_xor_b32 v{vVR+k}, {TOG}, v{vVR+k}")
    def pfetch():
        e(f"    s_set_gpr_idx_on s{sIDX}, gpr_idx(SRC0)")
        for p in range(4): e(f"    v_mov_b32 v{vP+p}, v{vST+p}")
        e(f"    v_mov_b32 v{vAL}, v{vST+4}")
        e("    s_set_gpr_idx_off")
        e(f"    s_add_u32 s{sIDX}, s{sIDX}, 5")
        e("    s_waitcnt lgkmcnt(0)")
    def resc(half):
        for i in range(16*half, 16*half+16): e(f"    v_mul_f32 v{vO+i}, v{vO+i}, v{vAL}")
    def pv():
        if a.pe: duty()
        e(f"    s_sub_u32 s{sCNT}, s{sCNT}, 1")
        if RS > R and not a.tau and not a.th:
            e(f"    s_cmp_le_u32 s{sCNT}, s52" if a.n2e >= 0 else f"    s_cmp_le_u32 s{sCNT}, {a.n2}")
            e("    s_cselect_b64 vcc, -1, vcc" if a.pe else "    s_cselect_b64 vcc, -1, 0")
        e(f"    s_cmp_eq_u32 s{sCNT}, 0")
        for jd in range(8):
            e(f"    s_waitcnt lgkmcnt({7-jd})")
            e(f"    v_mfma_f32_16x16x32_bf16 {r(vO+4*jd,4)}, {r(vVT+4*jd,4)}, {r(vP,4)}, {r(vO+4*jd,4)}")
        e("    s_cbranch_scc1 L_epi")
    v1 = [lambda: vread(1)] + ([pv] if a.pvnow else [])
    t2 = {3: [lambda: vread(0)], 4: [pfetch], 5: [lambda: resc(0)], 6: [lambda: resc(1)], 7: v1}
    if not a.pvnow: t2[8] = [pv]
    if a.tau:
        t2[3] = [pace_issue] + t2[3]; t2[5] = [pace] + t2[5]
    def endboost():
        e(f"    s_cmp_le_u32 s{sCNT}, {a.n2}")
        e("    s_cselect_b64 vcc, -1, vcc")
    if a.th:
        eb = [endboost] if a.n2 else []
        t2[8] = [ground]
        if RS <= 6: t2[3] = [publish] + t2[3]; t2[10] = [decide] + eb
        else: t2[3] = [decide] + eb + [publish] + t2[3]
    if a.align: e(f"    .p2align {a.align}")
    e("L_p2:")
    if a.stamp: trace_dyn()
    for s in range(S0, S0 + 8):
        pre_load(s)
        wait(True, s)
        load(s, False)
        for t in t2.get(s - RS, []): t()
    e("    s_branch L_p2")

    e("L_epi:")
    if a.stamp: trace(35)
    e(f"    s_cmp_eq_u32 s{sW}, {NW}")
    e(f"    v_lshlrev_b32 v{vA}, 4, v0")
    for jd in range(8):
        if jd == 0: e("    s_nop 0")
        e(f"    ds_write_b128 v{vWA}, {r(vO+4*jd,4)} offset:{64*jd}")
    e("    s_cselect_b64 exec, 0, -1")
    e("    s_waitcnt lgkmcnt(0)")
    e("    s_cbranch_scc1 L_nobar2")
    e("    s_barrier")
    e("L_nobar2:")
    if a.stamp: trace(36)
    PB = vST
    NR = NW if a.premerge else NP
    for w in range(NR):
        for x in range(2):
            e(f"    ds_read_b128 {r(PB+8*w+4*x,4)}, v{vRA} offset:{w*OW + 16*x}")
    for w in range(NR):
        e(f"    s_waitcnt lgkmcnt({2*(NR-1-w)})")
        for x in range(8):
            if w == 0 and not a.premerge: e(f"    v_mul_f32 v{vVT+x}, v{PB+x}, v{vF}")
            elif w == 0: e(f"    v_fma_f32 v{vVT+x}, v{PB+x}, v{vF}, v{vAC+x}")
            else: e(f"    v_fma_f32 v{vVT+x}, v{PB+8*w+x}, v{vF+w}, v{vVT+x}")
    for x in range(4): e(f"    v_cvt_pk_bf16_f32 v{vP+x}, v{vVT+2*x}, v{vVT+2*x+1}")
    e("    s_cbranch_scc1 L_end")
    e(f"    buffer_store_dwordx4 {r(vP,4)}, v{vA}, {sr(SRD_O,4)}, 0 offen{a.stc}")
    if a.stamp:
        e("    s_waitcnt vmcnt(0)")
        trace(37)
        e("    s_load_dwordx2 s[4:5], s[0:1], 64")
        e(f"    s_lshl_b32 s{sT0}, s2, 10")
        e(f"    v_lshlrev_b32 v{vA}, 2, v0")
        e("    s_waitcnt lgkmcnt(0)")
        e(f"    s_mov_b32 s{SRD_M}, s4")
        e(f"    s_mov_b32 s{SRD_M+1}, s5")
        e(f"    s_mov_b32 s{SRD_M+2}, 0x100000")
        e(f"    s_mov_b32 s{SRD_M+3}, 0x00020000")
        e(f"    buffer_store_dword v{vTR}, v{vA}, {sr(SRD_M,4)}, s{sT0} offen")
    if a.dbg > 1:
        if a.absref >= 0:
            e(f"    v_mov_b32 v{vA}, 128")
            e(f"    global_load_dword v{vB}, v{vA}, s[18:19] sc0 sc1")
            e("    s_waitcnt vmcnt(0)")
            e(f"    v_readfirstlane_b32 s56, v{vB}")
            e("    s_nop 3")
        e("L_hold:")
        e("    s_sleep 4")
        e("    s_memrealtime s[60:61]")
        e("    s_waitcnt lgkmcnt(0)")
        e("    s_sub_u32 s60, s60, s56")
        e(f"    s_cmp_lt_u32 s60, {a.dbg}")
        e("    s_cbranch_scc1 L_hold")
    if a.dbg:
        e("    s_waitcnt vmcnt(0)")
        e("    s_memrealtime s[60:61]")
        e("    s_cmp_ge_u32 s2, 16")
        e("    s_cbranch_scc1 L_end")
        e(f"    s_cmp_lg_u32 s{sW}, 0")
        e("    s_cbranch_scc1 L_end")
        e("    s_waitcnt lgkmcnt(0)")
        e("    s_sub_u32 s60, s60, s56")
        e("    s_sub_u32 s58, s58, s56")
        e("    s_mul_i32 s58, s58, 100000")
        e("    s_add_u32 s60, s60, s58")
        e(f"    s_mov_b32 s{SRD_M}, s18")
        e(f"    s_mov_b32 s{SRD_M+1}, s19")
        e(f"    s_mov_b32 s{SRD_M+2}, 256")
        e(f"    s_mov_b32 s{SRD_M+3}, 0x00020000")
        e("    s_mov_b64 exec, 1")
        e(f"    v_mov_b32 v{vB}, s60")
        e(f"    s_lshl_b32 s{sT0}, s2, 2")
        e(f"    v_mov_b32 v{vA}, s{sT0}")
        e(f"    buffer_store_dword v{vB}, v{vA}, {sr(SRD_M,4)}, 0 offen")
    e("L_end:")
    e("    s_endpgm")
    for n in stubs:
        e(f"L_gr{n}:")
        e("    s_mov_b32 s56, 1")
        e("    s_atomic_add s56, s[26:27], 0x0 glc")
        e(f"    v_lshl_add_u32 v{vA}, v{vLN}, 6, 32")
        e("    s_waitcnt lgkmcnt(0)")
        e("    s_sub_u32 s56, s56, s52")
        e("    s_min_u32 s56, s56, 7")
        e(f"    s_mul_i32 s56, s56, {a.gk}")
        e(f"    s_add_u32 s57, s53, {(7*a.gk + 1)//2}")
        e("    s_sub_u32 s56, s57, s56")
        e("    s_xor_b32 s56, s56, s53")
        e(f"    v_mov_b32 v{vB}, s56")
        e(f"    buffer_store_byte v{vB}, v{vA}, {sr(SRD_D,4)}, 0 offen")
        e(f"    s_branch L_grb{n}")
    e('.section .rodata,"a"')
    e(".p2align 6")
    e(f".amdhsa_kernel {NAME}_kernel")
    e(f"  .amdhsa_next_free_vgpr {NV}")
    e("  .amdhsa_next_free_sgpr 64")
    e(f"  .amdhsa_accum_offset {NV}")
    e("  .amdhsa_group_segment_fixed_size 0")
    e("  .amdhsa_kernarg_size 72")
    e("  .amdhsa_user_sgpr_count 2")
    e("  .amdhsa_user_sgpr_kernarg_segment_ptr 1")
    e("  .amdhsa_system_sgpr_workgroup_id_x 1")
    e(".end_amdhsa_kernel")
    return "\n".join(L) + "\n"

def parser():
    ap = argparse.ArgumentParser()
    ap.add_argument("--r", type=int, default=5)
    ap.add_argument("--r0", type=int, default=0)
    ap.add_argument("--rs", type=int, default=0)
    ap.add_argument("--r2", type=int, default=0)
    ap.add_argument("--n2", type=int, default=0)
    ap.add_argument("--n2e", type=int, default=-1)
    ap.add_argument("--pe", type=int, default=0)
    ap.add_argument("--po", type=int, default=1000)
    ap.add_argument("--tau", type=int, default=0)
    ap.add_argument("--t0", type=int, default=60)
    ap.add_argument("--lo", type=int, default=0)
    ap.add_argument("--ord", type=int, default=1)
    ap.add_argument("--qlds", type=int, default=1)
    ap.add_argument("--premerge", type=int, default=1)
    ap.add_argument("--th", type=int, default=0)
    ap.add_argument("--the", type=int, default=-1)
    ap.add_argument("--lopos", type=int, default=0)
    ap.add_argument("--st0", type=int, default=0)
    ap.add_argument("--ld0", type=int, default=0)
    ap.add_argument("--pubw", type=int, default=0)
    ap.add_argument("--gp", type=int, default=0)
    ap.add_argument("--g0", type=int, default=4)
    ap.add_argument("--gn", type=int, default=14)
    ap.add_argument("--gk", type=int, default=2)
    ap.add_argument("--gw", type=int, default=1)
    ap.add_argument("--gstride", type=int, default=4352)
    ap.add_argument("--vtouch", type=int, default=0)
    ap.add_argument("--hi0", type=int, default=0)
    ap.add_argument("--pvnow", type=int, default=1)
    ap.add_argument("--align", type=int, default=0)
    ap.add_argument("--stamp", type=int, default=0)
    ap.add_argument("--dbg", type=int, default=0)
    ap.add_argument("--absref", type=int, default=-1)
    ap.add_argument("--stc", default="")
    ap.add_argument("--qc", default="")
    ap.add_argument("-o", default="/dev/stdout")
    return ap
if __name__ == "__main__":
    a = parser().parse_args()
    if a.stc: a.stc = " " + a.stc.replace(",", " ")
    if a.qc: a.qc = " " + a.qc.replace(",", " ")
    if a.rs and not a.r2: a.r2 = a.r
    if a.the < 0: a.the = a.th
    open(a.o, "w").write(gen(a))
```

```python
import argparse, struct, math
from gen import NAME, HEADER, f32bits

DOC = """;
"""

def gen(a):
    NW, NP, NBLK = 4, 5, 32
    R, R2 = a.r, a.r2
    RS = R2
    assert RS == 6 and a.qpos <= 3
    L = []; e = L.append
    cm = lambda t: e(f"    ; {t}")
    sQ, sKC, sVC, sKT, sVT, sMK, sOUT, sDBG = 4, 6, 8, 10, 12, 14, 16, 18
    SRD, sVB, sWS, SRD_Q, SRD_O, SRD_D, SRD_M = 20, 24, 26, 28, 32, 36, 56
    sW, sO0, sO1, sCNT, sC, sREM, sIDX, sT0, sT1, sNB, sLW, sT2, sRND, sN, sTH = 40, 41, 42, 43, 44, 45, 46, 47, 48, 49, 50, 51, 54, 52, 53
    vSRC, vKR, vM, vL, vA, vB, vAL, vWA, vRA, vSA, vVR, vP, vF = 1, 2, 4, 5, 6, 7, 8, 9, 10, 11, 12, 16, 20
    vDT, vOWN, vLN, vC4, vG4, vDO = 26, 27, 28, 29, 30, 31
    vAC = [2, 3, 4, 5, 11, 25, 29, 30]
    vO, vVT, vST = 32, 64, 96
    vQ, vKF, vS, vBI = 32, 48, 64, 72
    vTR = 95 if False else None
    NV = 256
    r = lambda b, n: f"v[{b}:{b+n-1}]"
    sr = lambda b, n: f"s[{b}:{b+n-1}]"
    SL = 1152
    HALF = 8 * SL
    TOG = 65536
    STB = NP * HALF
    QB = STB + 1024
    OBASE = TOG + NP * HALF
    OSTR, OW = 528, 16 * 528
    LDS = OBASE + NP * OW
    STEP = NW * 8192
    S0 = RS + 3
    ORD = {0: [0, 2, 1, 3, 4, 6, 5, 7], 1: [0, 1, 2, 3, 4, 5, 6, 7], 2: [2, 0, 1, 3, 6, 4, 5, 7], 3: [1, 2, 0, 3, 5, 6, 4, 7]}[a.ord]
    lab = [0]
    stubs = []
    ST_ = a.stamp

    e(HEADER.rstrip())
    e(f"; @launch grid=(256,1,1) block=(320,1,1) lds={LDS}")
    e(DOC.rstrip())
    e('.amdgcn_target "amdgcn-amd-amdhsa--gfx950"')
    e(".text")
    e(f".globl {NAME}_kernel")
    e(".p2align 8")
    e(f".type {NAME}_kernel,@function")
    e(f"{NAME}_kernel:")
    if ST_: e("    s_memrealtime s[64:65]")
    e("    s_load_dwordx16 s[4:19], s[0:1], 0")
    e(f"    s_load_dwordx2 {sr(sWS,2)}, s[0:1], 64")
    e(f"    v_lshrrev_b32 v{vA}, 6, v0")
    e(f"    v_and_b32 v{vC4}, 15, v0                    ; c = lane & 15")
    e(f"    v_readfirstlane_b32 s{sW}, v{vA}")
    e(f"    v_bfe_u32 v{vG4}, v0, 4, 2                  ; g = lane >> 4")
    e("    s_cmp_ge_u32 s2, 256")
    e("    s_cbranch_scc1 L_end")
    cm("DMA source offset: row g, 16-B chunk c ^ 2g (swizzle makes both fragment read patterns conflict free)")
    e(f"    v_lshlrev_b32 v{vA}, 1, v{vG4}")
    e(f"    v_xor_b32 v{vA}, v{vA}, v{vC4}")
    e(f"    v_lshlrev_b32 v{vA}, 4, v{vA}")
    e(f"    v_lshl_add_u32 v{vSRC}, v{vG4}, 8, v{vA}")
    if a.hm:
        e(f"    s_lshr_b32 s3, s2, {a.hx}") if a.hx > 0 else e(f"    s_lshl_b32 s3, s2, {-a.hx}")
        e(f"    s_and_b32 s3, s3, {a.hm}")
        e("    s_xor_b32 s3, s3, s2")
    if a.hp:
        e("    s_mov_b32 s3, s2")
        for i, mk in enumerate(a.hp):
            if not mk: continue
            e(f"    s_and_b32 s60, s2, {mk << 3}")
            e("    s_bcnt1_i32_b32 s60, s60")
            e("    s_and_b32 s60, s60, 1")
            if i: e(f"    s_lshl_b32 s60, s60, {i}")
            e("    s_xor_b32 s3, s3, s60")
    H = "s3" if (a.hm or a.hp) else "s2"
    e(f"    s_lshl_b32 s{sT0}, {H}, 20")
    e(f"    s_lshl_b32 s{sO0}, s{sW}, {a.wsh}")
    e(f"    s_lshl_b32 s{sT1}, {H}, 12")
    e(f"    s_add_u32 s{sT0}, s{sT0}, s{sO0}")
    e(f"    s_sub_u32 s{SRD+2}, 0x100000, s{sO0}")
    e(f"    s_mul_i32 s{sLW}, s{sW}, {HALF}")
    e(f"    s_mov_b32 s{SRD+3}, 0x00020000")
    e(f"    s_mov_b32 s{sO0}, 0")
    e(f"    s_mov_b32 s{sNB}, {NBLK}")
    if a.ix:
        e(f"    s_lshr_b32 s63, s2, {a.ixs}")
        e(f"    s_lshl_b32 s63, s63, {15 + a.ixl}")
        e(f"    s_and_b32 s63, s63, {a.ix << 15}")
        e("    s_mov_b32 s61, s63")
    if a.qsplit:
        e(f"    s_mov_b32 s{SRD_Q+2}, 4096")
        e(f"    s_mov_b32 s{SRD_Q+3}, 0x00020000")
    e(f"    s_add_u32 m0, s{sLW}, {ORD[0]*SL - 1024*ORD[0]}")
    e(f"    s_cmp_eq_u32 s{sW}, {NW}")
    e("    s_waitcnt lgkmcnt(0)")
    if ST_: e("    s_memrealtime s[66:67]")
    e("    s_cbranch_scc1 L_tree0")
    e("L_go:")
    e(f"    s_add_u32 s{SRD}, s{sKC}, s{sT0}")
    e(f"    s_addc_u32 s{SRD+1}, s{sKC+1}, 0")

    def pre_load(s):
        j = ORD[s % 8]
        e(f"    s_add_u32 m0, s{sLW}, {j*SL - 1024*(j&3)}")
    def load(s, switch):
        j = ORD[s % 8]
        sE0 = 61 if a.ix else sO0
        so = sE0 if j < 4 else sO1
        e(f"    buffer_load_dwordx4 v{vSRC}, {sr(SRD,4)}, s{so} offen offset:{1024*(j&3)} nt lds")
        if j == 3:
            e(f"    s_add_u32 s{sO1}, s{sE0}, {a.t1off}")
        if j == 7:
            e(f"    s_add_u32 s{sO0}, s{sO0}, {STEP}")
            e(f"    s_xor_b32 s{sLW}, s{sLW}, {TOG}")
            if switch:
                e(f"    s_sub_u32 s{sREM}, s{sREM}, 1")
                e(f"    s_cmp_eq_u32 s{sREM}, 0")
                e(f"    s_cselect_b64 {sr(SRD,2)}, {sr(sVB,2)}, {sr(SRD,2)}")
                e(f"    s_cselect_b32 s{sO0}, 0, s{sO0}")
            if a.ix: e(f"    s_xor_b32 s61, s{sO0}, s63")
    def cnt_for(ring, k):
        rel = (k - S0) % 8
        return ring - 1 + (2 if 1 <= rel <= ring else 0)
    def wait(k):
        rel = (k - S0) % 8
        lab[0] += 1
        e(f"    s_cbranch_vccnz L_b{lab[0]}")
        e(f"    s_waitcnt vmcnt({cnt_for(R-1 if rel == 0 else R, k)})")
        e(f"L_b{lab[0]}:")
        e(f"    s_waitcnt vmcnt({cnt_for(R2, k) - (1 if rel == 4 else 0)})")
    def publish():
        e(f"    v_add_u32 v{vOWN}, 1, v{vOWN}")
        e(f"    buffer_store_byte v{vOWN}, v{vDO}, {sr(SRD_D,4)}, 0 offen")
        e(f"    buffer_load_ubyte v{vDT}, v{vLN}, {sr(SRD_D,4)}, 0 offen nt")
    def ground():
        n = len(stubs); stubs.append(n)
        e(f"    s_sub_u32 s{sRND}, s{sRND}, 1")
        e(f"    s_cmp_eq_u32 s{sRND}, 0")
        e(f"    s_cbranch_scc1 L_gr{n}")
        e(f"L_grb{n}:")
    def decide():
        e(f"    v_cmp_ge_u32 vcc, v{vDT}, v{vOWN}")
        e(f"    v_readlane_b32 s{sTH}, v{vDT}, 32")
        e(f"    s_bcnt1_i32_b32 s{sN}, vcc_lo")
        e(f"    s_xor_b32 s{sTH}, s{sTH}, {a.th}")
        e(f"    s_cmp_gt_u32 s{sN}, s{sTH}")
        e("    s_cselect_b64 vcc, -1, 0")

    QPOS = a.qpos
    for s in range(R):
        if s == QPOS and a.qsplit:
            cm("each streaming wave stages 4 rows of Q (the tree wave's offset is out of range)")
            e(f"    s_add_u32 s{SRD_Q}, s{sQ}, s{sT1}")
            e(f"    s_addc_u32 s{SRD_Q+1}, s{sQ+1}, 0")
            e(f"    s_mul_i32 s{sT2}, s{sW}, {SL}")
            e(f"    s_add_u32 m0, s{sT2}, {QB}")
            e(f"    s_lshl_b32 s{sT2}, s{sW}, 10")
            e(f"    buffer_load_dwordx4 v{vSRC}, {sr(SRD_Q,4)}, s{sT2} offen nt lds")
        if s > 0:
            pre_load(s)
            e("    s_nop 0" if s != 1 else f"    s_mov_b32 s{sREM}, s{sNB}")
        load(s, True)
    e(f"    s_add_u32 s{sVB}, s{sVC}, s{sT0}")
    e(f"    s_addc_u32 s{sVB+1}, s{sVC+1}, 0")
    cm("K / Q fragment read addresses: slot c>>2, row r = c&3, chunk (4m+g) ^ 2r")
    e(f"    s_mul_i32 s{sT2}, s{sW}, {HALF}")
    e(f"    v_lshrrev_b32 v{vA}, 2, v{vC4}")
    e(f"    v_mul_u32_u24 v{vKR}, {SL}, v{vA}")
    e(f"    v_and_b32 v{vB}, 3, v{vC4}")
    e(f"    v_lshl_add_u32 v{vKR}, v{vB}, 8, v{vKR}")
    e(f"    v_lshlrev_b32 v{vB}, 1, v{vB}")
    e(f"    v_xor_b32 v{vB}, v{vB}, v{vG4}")
    e(f"    v_lshl_add_u32 v{vKR}, v{vB}, 4, v{vKR}")
    e(f"    v_add_u32 v{vWA}, {QB}, v{vKR}")
    e(f"    v_add_u32 v{vKR}, s{sT2}, v{vKR}")
    e(f"    v_xor_b32 v{vRA}, 64, v{vWA}")
    e(f"    v_xor_b32 v{vKR+1}, 64, v{vKR}")
    c = (128 ** -0.5) * math.log2(math.e)
    e(f"    s_mov_b32 s{sC}, {f32bits(c):#x}               ; D^-0.5 * log2(e)")
    e(f"    v_mov_b32 v{vM}, 0xff800000")
    e(f"    v_mov_b32 v{vL}, 0")
    e(f"    s_mov_b32 s{sIDX}, 0")
    e(f"    s_mov_b32 s{sCNT}, s{sNB}")
    e("    s_mov_b64 vcc, 0")
    cm("progress table in d_debug: byte wg>>3 = iteration reached, byte 32 = threshold hint")
    e(f"    s_mov_b32 s{SRD_D}, s{sDBG}")
    e(f"    s_mov_b32 s{SRD_D+1}, s{sDBG+1}")
    e(f"    s_mov_b32 s{SRD_D+2}, 36")
    e(f"    s_mov_b32 s{SRD_D+3}, 0x00020000")
    e(f"    s_lshr_b32 s{sT0}, s2, 3")
    e(f"    v_and_b32 v{vLN}, 63, v0")
    e(f"    v_lshl_add_u32 v{vDO}, v0, 6, s{sT0}")
    e(f"    v_mov_b32 v{vOWN}, 1")
    e(f"    s_mul_i32 s{sRND}, s{sT0}, {a.gp}")
    e(f"    s_add_u32 s{sRND}, s{sRND}, {a.g0}")
    e(f"    s_cmp_lt_u32 s{sT0}, {a.gn}")
    e(f"    s_cselect_b32 s{sRND}, s{sRND}, 0")
    e(f"    s_cmp_eq_u32 s{sW}, 1")
    e(f"    s_cselect_b32 s{sRND}, s{sRND}, 0")
    e(f"    s_mul_i32 s{sT0}, s{sT0}, {a.gstride}")
    e(f"    s_add_u32 s{sWS}, s{sWS}, s{sT0}")
    e(f"    s_addc_u32 s{sWS+1}, s{sWS+1}, 0")
    if ST_: e(f"    s_add_u32 s{sWS}, s{sWS}, 0x200000\n    s_addc_u32 s{sWS+1}, s{sWS+1}, 0")
    for s in range(R, S0):
        pre_load(s)
        if ST_ and s == R: e("    s_memrealtime s[68:69]")
        e(f"    s_waitcnt vmcnt({R - 1 + (1 if (a.qsplit and s - R < QPOS) else 0)})")
        if ST_ and s == R: e("    s_memrealtime s[70:71]")
        load(s, True)
    if ST_: e("    s_memrealtime s[72:73]")
    e(f"    s_cmp_eq_u32 s{sW}, {NW}")
    e("    s_cbranch_scc1 L_nobar0")
    for i in range(8): e(f"    v_mov_b32 v{vBI+i}, 0")
    if a.late:
        pass
    def late_setup():
        cm("V transposing-read addresses: slot g, row r = c>>2, byte ((jd ^ r) * 32) + (c&3) * 8")
        e(f"    v_lshrrev_b32 v{vA}, 2, v{vC4}")
        e(f"    v_mul_u32_u24 v{vVR}, {SL}, v{vG4}")
        e(f"    v_lshl_add_u32 v{vVR}, v{vA}, 8, v{vVR}")
        e(f"    v_and_b32 v{vB}, 3, v{vC4}")
        e(f"    v_lshl_add_u32 v{vVR}, v{vB}, 3, v{vVR}")
        e(f"    v_lshl_add_u32 v{vVR}, v{vA}, 5, v{vVR}")
        e(f"    s_lshl_b32 s{sT0}, s{sNB}, 16")
        e(f"    s_and_b32 s{sT0}, s{sT0}, {TOG}")
        e(f"    s_add_u32 s{sT2}, s{sT2}, s{sT0}")
        e(f"    v_add_u32 v{vVR}, s{sT2}, v{vVR}")
        for k in range(1, 4):
            e(f"    v_xor_b32 v{vVR+k}, {32*k}, v{vVR}")
        cm("addresses for the (m,l) table, the partial write and the combine read; output descriptor")
        e(f"    s_lshl_b32 s{sT0}, s{sW}, 3")
        e(f"    s_add_u32 s{sT0}, s{sT0}, {STB}")
        e(f"    v_lshl_add_u32 v{vSA}, v{vC4}, 6, s{sT0}")
        e(f"    s_mul_i32 s{sT0}, s{sW}, {OW}")
        e(f"    s_add_u32 s{sT0}, s{sT0}, {OBASE}")
        e(f"    v_mul_u32_u24 v{vWA}, {OSTR}, v{vC4}")
        e(f"    v_lshl_add_u32 v{vWA}, v{vG4}, 4, v{vWA}")
        e(f"    v_add_u32 v{vWA}, s{sT0}, v{vWA}")
        e(f"    v_lshrrev_b32 v{vA}, 4, v0")
        e(f"    v_mul_u32_u24 v{vRA}, {OSTR}, v{vA}")
        e(f"    v_lshl_add_u32 v{vRA}, v{vC4}, 5, v{vRA}")
        e(f"    v_add_u32 v{vRA}, {OBASE}, v{vRA}")
        e(f"    s_add_u32 s{SRD_O}, s{sOUT}, s{sT1}")
        e(f"    s_addc_u32 s{SRD_O+1}, s{sOUT+1}, 0")
        e(f"    s_mov_b32 s{SRD_O+2}, 4096")
        e(f"    s_mov_b32 s{SRD_O+3}, 0x00020000")
    e("    s_barrier")
    e("L_nobar0:")
    for m in range(4):
        e(f"    ds_read_b128 {r(vQ+4*m,4)}, v{(vWA, vRA)[m&1]} offset:{128*(m>>1)}")
    if not a.late: late_setup()

    def xlane_reduce(op, va, vb):
        e(f"    v_mov_b32 v{vb}, v{va}")
        e("    s_nop 1")
        e(f"    v_permlane32_swap_b32 v{va}, v{vb}")
        e(f"    {op} v{va}, v{va}, v{vb}")
        e(f"    v_mov_b32 v{vb}, v{va}")
        e("    s_nop 1")
        e(f"    v_permlane16_swap_b32 v{va}, v{vb}")
        e(f"    {op} v{va}, v{va}, v{vb}")

    vTR = 25
    def trace(lane):
        e("    s_memrealtime s[60:61]")
        e("    s_waitcnt lgkmcnt(0)")
        e(f"    v_writelane_b32 v{vTR}, s60, {lane}")
    def trace_dyn():
        e("    s_memrealtime s[60:61]")
        e("    s_lshr_b32 s62, s55, 1" if ST_ != 3 else "    s_min_u32 s62, s55, 34")
        e("    s_waitcnt lgkmcnt(0)")
        e("    s_mov_b32 m0, s62")
        e(f"    v_writelane_b32 v{vTR}, s60, m0")
        e("    s_add_u32 s55, s55, 1")
    if ST_:
        vAC[5] = 19 + 0
        e("    s_waitcnt lgkmcnt(0)")
        e(f"    v_mov_b32 v{vTR}, 0")
        for i, sg in enumerate((64, 66, 68, 70, 72) if ST_ == 3 else (64, 72)): e(f"    v_writelane_b32 v{vTR}, s{sg}, {i}")
        e("    s_getreg_b32 s60, hwreg(HW_REG_XCC_ID)")
        e(f"    v_writelane_b32 v{vTR}, s60, 38")
        e("    s_mov_b32 s55, 5")

    def kread(t):
        for m in range(4):
            e(f"    ds_read_b128 {r(vKF+4*m,4)}, v{vKR+(m&1)} offset:{t*4*SL + 128*(m>>1)}")
        if t == 1:
            for k in range(2): e(f"    v_xor_b32 v{vKR+k}, {TOG}, v{vKR+k}")
    def qk(t):
        for m in range(4):
            e(f"    s_waitcnt lgkmcnt({3-m})")
            cc = r(vBI+4*t, 4) if m == 0 else r(vS+4*t, 4)
            e(f"    v_mfma_f32_16x16x32_bf16 {r(vS+4*t,4)}, {r(vKF+4*m,4)}, {r(vQ+4*m,4)}, {cc}")
    def sm1():
        cm("running max over this block's 32 keys, rescale factor")
        e(f"    v_max3_f32 v{vA}, v{vS}, v{vS+1}, v{vS+2}")
        e(f"    v_max3_f32 v{vB}, v{vS+3}, v{vS+4}, v{vS+5}")
        e(f"    v_max3_f32 v{vA}, v{vA}, v{vS+6}, v{vS+7}")
        e(f"    v_max_f32 v{vA}, v{vA}, v{vB}")
        xlane_reduce("v_max_f32", vA, vB)
        e(f"    v_mul_f32 v{vA}, s{sC}, v{vA}")
        e(f"    v_max_f32 v{vA}, v{vA}, v{vM}")
        e(f"    v_sub_f32 v{vAL}, v{vM}, v{vA}")
        e(f"    v_mov_b32 v{vM}, v{vA}")
        e(f"    v_exp_f32 v{vAL}, v{vAL}")
    def sm2():
        cm("P = exp2(S*c - m), row sum, pack to bf16 and park (P, alpha)")
        for i in range(8): e(f"    v_fma_f32 v{vS+i}, v{vS+i}, s{sC}, -v{vM}")
        for i in range(8): e(f"    v_exp_f32 v{vS+i}, v{vS+i}")
        e(f"    v_add_f32 v{vA}, v{vS}, v{vS+1}")
        e(f"    v_add_f32 v{vB}, v{vS+2}, v{vS+3}")
        e(f"    v_fma_f32 v{vL}, v{vL}, v{vAL}, v{vA}")
        e(f"    v_add_f32 v{vA}, v{vS+4}, v{vS+5}")
        e(f"    v_add_f32 v{vL}, v{vL}, v{vB}")
        e(f"    v_add_f32 v{vB}, v{vS+6}, v{vS+7}")
        e(f"    v_add_f32 v{vL}, v{vL}, v{vA}")
        for p in range(4): e(f"    v_cvt_pk_bf16_f32 v{vP+p}, v{vS+2*p}, v{vS+2*p+1}")
        e(f"    v_add_f32 v{vL}, v{vL}, v{vB}")
        e(f"    s_set_gpr_idx_on s{sIDX}, gpr_idx(DST)")
        for p in range(4): e(f"    v_mov_b32 v{vST+p}, v{vP+p}")
        e(f"    v_mov_b32 v{vST+4}, v{vAL}")
        e("    s_set_gpr_idx_off")
        e(f"    s_add_u32 s{sIDX}, s{sIDX}, 5")
    t1 = {3: [publish, lambda: kread(0)], 4: [lambda: qk(0)], 5: [ground], 7: [lambda: kread(1)], 8: [lambda: qk(1)],
          9: [sm1], 10: [sm2, decide]}
    e("L_p1:")
    if ST_: trace_dyn()
    for s in range(S0, S0 + 8):
        pre_load(s)
        wait(s)
        n0 = len(L)
        load(s, True)
        if s - RS == 9:
            assert len(L) - n0 >= 5
        for t in t1.get(s - RS, []): t()
    e(f"    s_sub_u32 s{sCNT}, s{sCNT}, 1")
    e(f"    s_cmp_lg_u32 s{sCNT}, 0")
    e("    s_cbranch_scc1 L_p1")

    if a.late: late_setup()
    xlane_reduce("v_add_f32", vL, vB)
    e(f"    ds_write_b64 v{vSA}, {r(vM,2)}")
    for i in range(32): e(f"    v_mov_b32 v{vO+i}, 0")
    e(f"    v_lshrrev_b32 v{vA}, 4, v0")
    e(f"    v_lshlrev_b32 v{vA}, 6, v{vA}")
    e(f"    s_mov_b32 s{sIDX}, 0")
    e(f"    s_mov_b32 s{sCNT}, s{sNB}")
    e(f"    s_cmp_eq_u32 s{sW}, {NW}")
    e("    s_cselect_b64 exec, 0, -1")
    e("    s_waitcnt lgkmcnt(0)")
    e("    s_cbranch_scc1 L_nobar1")
    e("    s_barrier")
    e("L_nobar1:")
    ST = vVT
    for i in range(3):
        e(f"    ds_read_b128 {r(ST+4*i,4)}, v{vA} offset:{STB + 16*i}")
    for x in range(2):
        e(f"    ds_read_b128 {r(ST+16+4*x,4)}, v{vRA} offset:{NW*OW + 16*x}")
    e("    s_waitcnt lgkmcnt(0)")
    e(f"    v_max3_f32 v{vA}, v{ST}, v{ST+2}, v{ST+4}")
    e(f"    v_max3_f32 v{vA}, v{vA}, v{ST+6}, v{ST+8}")
    for w in range(NP): e(f"    v_sub_f32 v{vF+w}, v{ST+2*w}, v{vA}")
    for w in range(NP): e(f"    v_exp_f32 v{vF+w}, v{vF+w}")
    e("    s_nop 0")
    e(f"    v_mul_f32 v{vB}, v{vF}, v{ST+1}")
    for w in range(1, NP): e(f"    v_fma_f32 v{vB}, v{vF+w}, v{ST+2*w+1}, v{vB}")
    e(f"    v_rcp_f32 v{vB}, v{vB}")
    e("    s_nop 0")
    for w in range(NP): e(f"    v_mul_f32 v{vF+w}, v{vF+w}, v{vB}")
    if ST_: vAC[5] = vF + 4
    for x in [0, 1, 2, 3, 4, 6, 7, 5]: e(f"    v_mul_f32 v{vAC[x]}, v{ST+16+x}, v{vF+4}")
    e("    s_mov_b64 exec, -1")

    def vread(t):
        for jd in range(8):
            e(f"    ds_read_b64_tr_b16 {r(vVT+4*jd+2*t,2)}, v{vVR+(jd&3)} offset:{t*4*SL + 128*(jd>>2)}")
        if t == 1:
            for k in range(4): e(f"    v_xor_b32 v{vVR+k}, {TOG}, v{vVR+k}")
    def pfetch():
        e(f"    s_set_gpr_idx_on s{sIDX}, gpr_idx(SRC0)")
        for p in range(4): e(f"    v_mov_b32 v{vP+p}, v{vST+p}")
        e(f"    v_mov_b32 v{vAL}, v{vST+4}")
        e("    s_set_gpr_idx_off")
        e(f"    s_add_u32 s{sIDX}, s{sIDX}, 5")
        e("    s_waitcnt lgkmcnt(0)")
    def resc(half):
        for i in range(16*half, 16*half+16): e(f"    v_mul_f32 v{vO+i}, v{vO+i}, v{vAL}")
    def pv():
        e(f"    s_sub_u32 s{sCNT}, s{sCNT}, 1")
        e(f"    s_cmp_eq_u32 s{sCNT}, 0")
        for jd in range(8):
            e(f"    s_waitcnt lgkmcnt({7-jd})")
            e(f"    v_mfma_f32_16x16x32_bf16 {r(vO+4*jd,4)}, {r(vVT+4*jd,4)}, {r(vP,4)}, {r(vO+4*jd,4)}")
        e("    s_cbranch_scc1 L_epi")
    t2 = {3: [publish, lambda: vread(0)], 4: [pfetch], 5: [lambda: resc(0)], 6: [lambda: resc(1)],
          7: [lambda: vread(1), pv], 8: [ground], 10: [decide]}
    e("L_p2:")
    if ST_: trace_dyn()
    for s in range(S0, S0 + 8):
        pre_load(s)
        wait(s)
        load(s, False)
        for t in t2.get(s - RS, []): t()
    e("    s_branch L_p2")

    e("L_epi:")
    if ST_: trace(35)
    e(f"    s_cmp_eq_u32 s{sW}, {NW}")
    e(f"    v_lshlrev_b32 v{vA}, 4, v0")
    e("    s_nop 0")
    for jd in range(8):
        e(f"    ds_write_b128 v{vWA}, {r(vO+4*jd,4)} offset:{64*jd}")
    e("    s_cselect_b64 exec, 0, -1")
    e("    s_waitcnt lgkmcnt(0)")
    e("    s_cbranch_scc1 L_nobar2")
    e("    s_barrier")
    e("L_nobar2:")
    if ST_: trace(36)
    PB = vST
    for w in range(NW):
        for x in range(2):
            e(f"    ds_read_b128 {r(PB+8*w+4*x,4)}, v{vRA} offset:{w*OW + 16*x}")
    for w in range(NW):
        e(f"    s_waitcnt lgkmcnt({2*(NW-1-w)})")
        for x in range(8):
            acc = vAC[x] if w == 0 else vVT + x
            e(f"    v_fma_f32 v{vVT+x}, v{PB+8*w+x}, v{vF+w}, v{acc}")
    for x in range(4): e(f"    v_cvt_pk_bf16_f32 v{vP+x}, v{vVT+2*x}, v{vVT+2*x+1}")
    e("    s_cbranch_scc1 L_end")
    e(f"    buffer_store_dwordx4 {r(vP,4)}, v{vA}, {sr(SRD_O,4)}, 0 offen")
    if ST_:
        e("    s_waitcnt vmcnt(0)")
        trace(37)
        e("    s_load_dwordx2 s[4:5], s[0:1], 64")
        e(f"    s_lshl_b32 s{sT0}, s2, 10")
        e(f"    v_lshlrev_b32 v{vA}, 2, v0")
        e("    s_waitcnt lgkmcnt(0)")
        e(f"    s_mov_b32 s{SRD_Q}, s4")
        e(f"    s_mov_b32 s{SRD_Q+1}, s5")
        e(f"    s_mov_b32 s{SRD_Q+2}, 0x100000")
        e(f"    s_mov_b32 s{SRD_Q+3}, 0x00020000")
        e(f"    buffer_store_dword v{vTR}, v{vA}, {sr(SRD_Q,4)}, s{sT0} offen")
    e("L_end:")
    e("    s_endpgm")

    e("L_tree0:")
    fillq = [f"    s_lshr_b32 s{sT0}, {H}, 5", f"    s_lshl_b32 s{sT0}, s{sT0}, 9", f"    s_mov_b32 s{SRD_M+2}, 512", f"    s_mov_b32 s{SRD_M+3}, 0x00020000"]
    if a.qsplit:
        if a.tbar: e("    s_barrier")
        for x in fillq: e(x)
    else:
        e(f"    s_add_u32 s{SRD_Q}, s{sQ}, s{sT1}")
        e(f"    s_addc_u32 s{SRD_Q+1}, s{sQ+1}, 0")
        e(f"    s_mov_b32 s{SRD_Q+2}, 4096")
        e(f"    s_mov_b32 s{SRD_Q+3}, 0x00020000")
        for j in range(4):
            e(f"    s_mov_b32 m0, {QB + j*SL - 1024*j}")
            e(fillq[j])
            e(f"    buffer_load_dwordx4 v{vSRC}, {sr(SRD_Q,4)}, 0 offen offset:{1024*j} nt lds")
    e(f"    s_add_u32 s{SRD_M}, s{sMK}, s{sT0}")
    e(f"    s_addc_u32 s{SRD_M+1}, s{sMK+1}, 0")
    e(f"    v_lshlrev_b32 v{vA}, 5, v{vC4}")
    e(f"    v_lshl_add_u32 v{vA}, v{vG4}, 3, v{vA}")
    e(f"    buffer_load_dwordx2 {r(vP,2)}, v{vA}, {sr(SRD_M,4)}, 0 offen")
    e(f"    s_mov_b64 {sr(sKC,2)}, {sr(sKT,2)}")
    e(f"    s_mov_b64 {sr(sVC,2)}, {sr(sVT,2)}")
    e(f"    s_mov_b32 s{sT0}, s{sT1}")
    e(f"    s_mov_b32 s{SRD+2}, 4096")
    e(f"    s_mov_b32 s{sNB}, 1")
    if a.ix: e("    s_mov_b32 s63, 0\n    s_mov_b32 s61, 0")
    e(f"    v_mov_b32 v{vB}, 0")
    nt = 1
    if a.touch:
        cm("first touch of the other small buffers while the address translation misses overlap")
        e(f"    v_mov_b32 v{vA}, s{sT1}")
        e(f"    global_load_dword v{vST}, v{vA}, {sr(sKT,2)}")
        e(f"    global_load_dword v{vST+1}, v{vA}, {sr(sVT,2)}")
        e(f"    global_load_dword v{vST+2}, v{vB}, {sr(sDBG,2)} nt")
        nt += 3
    cm("every eighth workgroup clears the ranking counter of its round")
    e(f"    s_lshr_b32 s{sT2}, s2, 3")
    e(f"    s_mul_i32 s{sT2}, s{sT2}, {a.gstride}")
    if ST_: e(f"    s_add_u32 s{sT2}, s{sT2}, 0x200000")
    e(f"    v_mov_b32 v{vA}, s{sT2}")
    big = 1e9 * math.sqrt(128.0)
    e(f"    s_mov_b32 s{sT2}, {f32bits(big):#x}               ; 1e9 / D^-0.5")
    for i in range(4): e(f"    v_mov_b32 v{vBI+4+i}, 0xff800000")
    if not a.qsplit: e(f"    s_waitcnt vmcnt({nt})")
    if not (a.qsplit and a.tbar): e("    s_barrier")
    e("    s_and_b32 s60, s2, 7")
    e("    s_cbranch_scc1 L_noclr")
    e(f"    global_store_dword v{vA}, v{vB}, {sr(sWS,2)} sc0 sc1")
    e("L_noclr:")
    e("    s_waitcnt vmcnt(0)")
    e(f"    v_lshlrev_b32 v{vBI}, 16, v{vP}")
    e(f"    v_and_b32 v{vBI+1}, 0xffff0000, v{vP}")
    e(f"    v_lshlrev_b32 v{vBI+2}, 16, v{vP+1}")
    e(f"    v_and_b32 v{vBI+3}, 0xffff0000, v{vP+1}")
    e(f"    s_add_u32 m0, s{sLW}, {ORD[0]*SL - 1024*ORD[0]}")
    for i in range(4): e(f"    v_fma_f32 v{vBI+i}, v{vBI+i}, s{sT2}, -s{sT2}")
    e("    s_branch L_go")

    for n in stubs:
        e(f"L_gr{n}:")
        e(f"    s_mov_b32 s{sN}, 1")
        e(f"    s_atomic_add s{sN}, {sr(sWS,2)}, 0x0 glc")
        e(f"    v_lshl_add_u32 v{vA}, v{vLN}, 6, 32")
        e("    s_waitcnt lgkmcnt(0)")
        e(f"    s_min_u32 s{sN}, s{sN}, 7")
        e(f"    s_mul_i32 s{sN}, s{sN}, {a.gk}")
        e(f"    s_sub_u32 s{sN}, {a.th + (7*a.gk + 1)//2}, s{sN}")
        e(f"    s_xor_b32 s{sN}, s{sN}, {a.th}")
        e(f"    v_mov_b32 v{vB}, s{sN}")
        e(f"    buffer_store_byte v{vB}, v{vA}, {sr(SRD_D,4)}, 0 offen")
        e(f"    s_branch L_grb{n}")
    e('.section .rodata,"a"')
    e(".p2align 6")
    e(f".amdhsa_kernel {NAME}_kernel")
    e(f"  .amdhsa_next_free_vgpr {NV}")
    e(f"  .amdhsa_next_free_sgpr {76 if ST_ else 64}")
    e(f"  .amdhsa_accum_offset {NV}")
    e("  .amdhsa_group_segment_fixed_size 0")
    e("  .amdhsa_kernarg_size 72")
    e("  .amdhsa_user_sgpr_count 2")
    e("  .amdhsa_user_sgpr_kernarg_segment_ptr 1")
    e("  .amdhsa_system_sgpr_workgroup_id_x 1")
    e(".end_amdhsa_kernel")
    return "\n".join(L) + "\n"

def parser():
    ap = argparse.ArgumentParser()
    ap.add_argument("--r", type=int, default=5)
    ap.add_argument("--r2", type=int, default=6)
    ap.add_argument("--th", type=int, default=20)
    ap.add_argument("--gp", type=int, default=3)
    ap.add_argument("--g0", type=int, default=4)
    ap.add_argument("--gn", type=int, default=19)
    ap.add_argument("--gk", type=int, default=3)
    ap.add_argument("--gstride", type=int, default=4352)
    ap.add_argument("--wsh", type=int, default=13)
    ap.add_argument("--t1off", type=int, default=4096)
    ap.add_argument("--ord", type=int, default=0)
    ap.add_argument("--hx", type=int, default=4)
    ap.add_argument("--hm", type=int, default=7)
    ap.add_argument("--hp", type=lambda x: [int(y) for y in x.split(",")], default=[])
    ap.add_argument("--ix", type=int, default=0)
    ap.add_argument("--ixs", type=int, default=3)
    ap.add_argument("--ixl", type=int, default=0)
    ap.add_argument("--touch", type=int, default=0)
    ap.add_argument("--late", type=int, default=1)
    ap.add_argument("--qsplit", type=int, default=1)
    ap.add_argument("--qpos", type=int, default=2)
    ap.add_argument("--tbar", type=int, default=0)
    ap.add_argument("--stamp", type=int, default=0)
    ap.add_argument("-o", default="/dev/stdout")
    return ap
if __name__ == "__main__":
    a = parser().parse_args()
    open(a.o, "w").write(gen(a))
```

```python
import argparse, struct, math
from gen import NAME, HEADER, f32bits

DOC = """;
"""

def gen(a):
    NW, NP, NBLK = 4, 5, 32
    R, R2 = a.r, a.r2
    RS = R2
    assert RS == 6 and a.qpos <= 3
    L = []; e = L.append
    cm = lambda t: e(f"    ; {t}")
    sQ, sKC, sVC, sKT, sVT, sMK, sOUT, sDBG = 4, 6, 8, 10, 12, 14, 16, 18
    SRD, sVB, sWS, SRD_Q, SRD_O, SRD_D, SRD_M = 20, 24, 26, 28, 32, 36, 56
    sW, sO0, sO1, sCNT, sC, sREM, sIDX, sT0, sT1, sNB, sLW, sT2, sRND, sN, sTH = 40, 41, 42, 43, 44, 45, 46, 47, 48, 49, 50, 51, 54, 52, 53
    vSRC, vKR, vM, vL, vA, vB, vAL, vWA, vRA, vSA, vVR, vP, vF = 1, 2, 4, 5, 6, 7, 8, 9, 10, 11, 12, 16, 20
    vDT, vOWN, vLN, vC4, vG4, vDO = 26, 27, 28, 29, 30, 31
    vAC = [2, 3, 4, 5, 11, 25, 29, 30]
    vO, vVT, vST = 32, 64, 96
    vQ, vKF, vS, vBI = 32, 48, 64, 72
    vTR = 95 if False else None
    NV = 256
    r = lambda b, n: f"v[{b}:{b+n-1}]"
    sr = lambda b, n: f"s[{b}:{b+n-1}]"
    SL = 1152
    HALF = 8 * SL
    TOG = 65536
    STB = NP * HALF
    QB = STB + 1024
    OBASE = TOG + NP * HALF
    OSTR, OW = 528, 16 * 528
    LDS = OBASE + NP * OW
    STEP = NW * 8192
    S0 = RS + 3
    ORD = {0: [0, 2, 1, 3, 4, 6, 5, 7], 1: [0, 1, 2, 3, 4, 5, 6, 7], 2: [2, 0, 1, 3, 6, 4, 5, 7], 3: [1, 2, 0, 3, 5, 6, 4, 7]}[a.ord]
    lab = [0]
    stubs = []
    ST_ = a.stamp

    e(HEADER.rstrip())
    e(f"; @launch grid=(256,1,1) block=(320,1,1) lds={LDS}")
    e(DOC.rstrip())
    e('.amdgcn_target "amdgcn-amd-amdhsa--gfx950"')
    e(".text")
    e(f".globl {NAME}_kernel")
    e(".p2align 8")
    e(f".type {NAME}_kernel,@function")
    e(f"{NAME}_kernel:")
    if ST_: e("    s_memrealtime s[64:65]")
    e("    s_load_dwordx16 s[4:19], s[0:1], 0")
    e(f"    s_load_dwordx2 {sr(sWS,2)}, s[0:1], 64")
    e(f"    v_lshrrev_b32 v{vA}, 6, v0")
    e(f"    v_and_b32 v{vC4}, 15, v0                    ; c = lane & 15")
    e(f"    v_readfirstlane_b32 s{sW}, v{vA}")
    e(f"    v_bfe_u32 v{vG4}, v0, 4, 2                  ; g = lane >> 4")
    e("    s_cmp_ge_u32 s2, 256")
    e("    s_cbranch_scc1 L_end")
    cm("DMA source offset: row g, 16-B chunk c ^ 2g (swizzle makes both fragment read patterns conflict free)")
    e(f"    v_lshlrev_b32 v{vA}, 1, v{vG4}")
    e(f"    v_xor_b32 v{vA}, v{vA}, v{vC4}")
    e(f"    v_lshlrev_b32 v{vA}, 4, v{vA}")
    e(f"    v_lshl_add_u32 v{vSRC}, v{vG4}, 8, v{vA}")
    if a.hm:
        e(f"    s_lshr_b32 s3, s2, {a.hx}") if a.hx > 0 else e(f"    s_lshl_b32 s3, s2, {-a.hx}")
        e(f"    s_and_b32 s3, s3, {a.hm}")
        e("    s_xor_b32 s3, s3, s2")
    if a.hp:
        e("    s_mov_b32 s3, s2")
        for i, mk in enumerate(a.hp):
            if not mk: continue
            e(f"    s_and_b32 s60, s2, {mk << 3}")
            e("    s_bcnt1_i32_b32 s60, s60")
            e("    s_and_b32 s60, s60, 1")
            if i: e(f"    s_lshl_b32 s60, s60, {i}")
            e("    s_xor_b32 s3, s3, s60")
    H = "s3" if (a.hm or a.hp) else "s2"
    e(f"    s_lshl_b32 s{sT0}, {H}, 20")
    e(f"    s_lshl_b32 s{sO0}, s{sW}, {a.wsh}")
    e(f"    s_lshl_b32 s{sT1}, {H}, 12")
    e(f"    s_add_u32 s{sT0}, s{sT0}, s{sO0}")
    e(f"    s_sub_u32 s{SRD+2}, 0x100000, s{sO0}")
    e(f"    s_mul_i32 s{sLW}, s{sW}, {HALF}")
    e(f"    s_mov_b32 s{SRD+3}, 0x00020000")
    e(f"    s_mov_b32 s{sO0}, 0")
    e(f"    s_mov_b32 s{sNB}, {NBLK}")
    if a.ix:
        e(f"    s_lshr_b32 s63, s2, {a.ixs}")
        e(f"    s_lshl_b32 s63, s63, {15 + a.ixl}")
        e(f"    s_and_b32 s63, s63, {a.ix << 15}")
        e("    s_mov_b32 s61, s63")
    if a.qsplit:
        e(f"    s_mov_b32 s{SRD_Q+2}, 4096")
        e(f"    s_mov_b32 s{SRD_Q+3}, 0x00020000")
    e(f"    s_add_u32 m0, s{sLW}, {ORD[0]*SL - 1024*ORD[0]}")
    e(f"    s_cmp_eq_u32 s{sW}, {NW}")
    e("    s_waitcnt lgkmcnt(0)")
    if ST_: e("    s_memrealtime s[66:67]")
    e("    s_cbranch_scc1 L_tree0")
    e("L_go:")
    e(f"    s_add_u32 s{SRD}, s{sKC}, s{sT0}")
    e(f"    s_addc_u32 s{SRD+1}, s{sKC+1}, 0")

    def pre_load(s):
        j = ORD[s % 8]
        e(f"    s_add_u32 m0, s{sLW}, {j*SL - 1024*(j&3)}")
    def load(s, switch):
        j = ORD[s % 8]
        sE0 = 61 if a.ix else sO0
        so = sE0 if j < 4 else sO1
        e(f"    buffer_load_dwordx4 v{vSRC}, {sr(SRD,4)}, s{so} offen offset:{1024*(j&3)} nt lds")
        if j == 3:
            e(f"    s_add_u32 s{sO1}, s{sE0}, {a.t1off}")
        if j == 7:
            e(f"    s_add_u32 s{sO0}, s{sO0}, {STEP}")
            e(f"    s_xor_b32 s{sLW}, s{sLW}, {TOG}")
            if switch:
                e(f"    s_sub_u32 s{sREM}, s{sREM}, 1")
                e(f"    s_cmp_eq_u32 s{sREM}, 0")
                e(f"    s_cselect_b64 {sr(SRD,2)}, {sr(sVB,2)}, {sr(SRD,2)}")
                e(f"    s_cselect_b32 s{sO0}, 0, s{sO0}")
            if a.ix: e(f"    s_xor_b32 s61, s{sO0}, s63")
    def cnt_for(ring, k):
        rel = (k - S0) % 8
        return ring - 1 + (2 if 1 <= rel <= ring else 0)
    def wait(k):
        rel = (k - S0) % 8
        lab[0] += 1
        e(f"    s_cbranch_vccnz L_b{lab[0]}")
        e(f"    s_waitcnt vmcnt({cnt_for(R-1 if rel == 0 else R, k)})")
        e(f"L_b{lab[0]}:")
        e(f"    s_waitcnt vmcnt({cnt_for(R2, k) - (1 if rel == 4 else 0)})")
    def publish():
        e(f"    v_add_u32 v{vOWN}, 1, v{vOWN}")
        e(f"    buffer_store_byte v{vOWN}, v{vDO}, {sr(SRD_D,4)}, 0 offen")
        e(f"    buffer_load_ubyte v{vDT}, v{vLN}, {sr(SRD_D,4)}, 0 offen nt")
    def ground():
        n = len(stubs); stubs.append(n)
        e(f"    s_sub_u32 s{sRND}, s{sRND}, 1")
        e(f"    s_cmp_eq_u32 s{sRND}, 0")
        e(f"    s_cbranch_scc1 L_gr{n}")
        e(f"L_grb{n}:")
    def decide():
        e(f"    v_cmp_ge_u32 vcc, v{vDT}, v{vOWN}")
        e(f"    v_readlane_b32 s{sTH}, v{vDT}, 32")
        e(f"    s_bcnt1_i32_b32 s{sN}, vcc_lo")
        e(f"    s_xor_b32 s{sTH}, s{sTH}, {a.th}")
        e(f"    s_cmp_gt_u32 s{sN}, s{sTH}")
        e("    s_cselect_b64 vcc, -1, 0")

    QPOS = a.qpos
    for s in range(R):
        if s == QPOS and a.qsplit:
            cm("each streaming wave stages 4 rows of Q (the tree wave's offset is out of range)")
            e(f"    s_add_u32 s{SRD_Q}, s{sQ}, s{sT1}")
            e(f"    s_addc_u32 s{SRD_Q+1}, s{sQ+1}, 0")
            e(f"    s_mul_i32 s{sT2}, s{sW}, {SL}")
            e(f"    s_add_u32 m0, s{sT2}, {QB}")
            e(f"    s_lshl_b32 s{sT2}, s{sW}, 10")
            e(f"    buffer_load_dwordx4 v{vSRC}, {sr(SRD_Q,4)}, s{sT2} offen nt lds")
        if s > 0:
            pre_load(s)
            e("    s_nop 0" if s != 1 else f"    s_mov_b32 s{sREM}, s{sNB}")
        load(s, True)
    e(f"    s_add_u32 s{sVB}, s{sVC}, s{sT0}")
    e(f"    s_addc_u32 s{sVB+1}, s{sVC+1}, 0")
    cm("K / Q fragment read addresses: slot c>>2, row r = c&3, chunk (4m+g) ^ 2r")
    e(f"    s_mul_i32 s{sT2}, s{sW}, {HALF}")
    e(f"    v_lshrrev_b32 v{vA}, 2, v{vC4}")
    e(f"    v_mul_u32_u24 v{vKR}, {SL}, v{vA}")
    e(f"    v_and_b32 v{vB}, 3, v{vC4}")
    e(f"    v_lshl_add_u32 v{vKR}, v{vB}, 8, v{vKR}")
    e(f"    v_lshlrev_b32 v{vB}, 1, v{vB}")
    e(f"    v_xor_b32 v{vB}, v{vB}, v{vG4}")
    e(f"    v_lshl_add_u32 v{vKR}, v{vB}, 4, v{vKR}")
    e(f"    v_add_u32 v{vWA}, {QB}, v{vKR}")
    e(f"    v_add_u32 v{vKR}, s{sT2}, v{vKR}")
    e(f"    v_xor_b32 v{vRA}, 64, v{vWA}")
    e(f"    v_xor_b32 v{vKR+1}, 64, v{vKR}")
    c = (128 ** -0.5) * math.log2(math.e)
    e(f"    s_mov_b32 s{sC}, {f32bits(c):#x}               ; D^-0.5 * log2(e)")
    e(f"    v_mov_b32 v{vM}, 0xff800000")
    e(f"    v_mov_b32 v{vL}, 0")
    e(f"    s_mov_b32 s{sIDX}, 0")
    e(f"    s_mov_b32 s{sCNT}, s{sNB}")
    e("    s_mov_b64 vcc, 0")
    cm("progress table in d_debug: byte wg>>3 = iteration reached, byte 32 = threshold hint")
    e(f"    s_mov_b32 s{SRD_D}, s{sDBG}")
    e(f"    s_mov_b32 s{SRD_D+1}, s{sDBG+1}")
    e(f"    s_mov_b32 s{SRD_D+2}, 36")
    e(f"    s_mov_b32 s{SRD_D+3}, 0x00020000")
    e(f"    s_lshr_b32 s{sT0}, s2, 3")
    e(f"    v_and_b32 v{vLN}, 63, v0")
    e(f"    v_lshl_add_u32 v{vDO}, v0, 6, s{sT0}")
    e(f"    v_mov_b32 v{vOWN}, 1")
    e(f"    s_mul_i32 s{sRND}, s{sT0}, {a.gp}")
    e(f"    s_add_u32 s{sRND}, s{sRND}, {a.g0}")
    e(f"    s_cmp_lt_u32 s{sT0}, {a.gn}")
    e(f"    s_cselect_b32 s{sRND}, s{sRND}, 0")
    e(f"    s_cmp_eq_u32 s{sW}, 1")
    e(f"    s_cselect_b32 s{sRND}, s{sRND}, 0")
    e(f"    s_mul_i32 s{sT0}, s{sT0}, {a.gstride}")
    e(f"    s_add_u32 s{sWS}, s{sWS}, s{sT0}")
    e(f"    s_addc_u32 s{sWS+1}, s{sWS+1}, 0")
    if ST_: e(f"    s_add_u32 s{sWS}, s{sWS}, 0x200000\n    s_addc_u32 s{sWS+1}, s{sWS+1}, 0")
    for s in range(R, S0):
        pre_load(s)
        if ST_ and s == R: e("    s_memrealtime s[68:69]")
        e(f"    s_waitcnt vmcnt({R - 1 + (1 if (a.qsplit and s - R < QPOS) else 0)})")
        if ST_ and s == R: e("    s_memrealtime s[70:71]")
        load(s, True)
    if ST_: e("    s_memrealtime s[72:73]")
    e(f"    s_cmp_eq_u32 s{sW}, {NW}")
    e("    s_cbranch_scc1 L_nobar0")
    for i in range(8): e(f"    v_mov_b32 v{vBI+i}, 0")
    if a.late:
        pass
    def late_setup():
        cm("V transposing-read addresses: slot g, row r = c>>2, byte ((jd ^ r) * 32) + (c&3) * 8")
        e(f"    v_lshrrev_b32 v{vA}, 2, v{vC4}")
        e(f"    v_mul_u32_u24 v{vVR}, {SL}, v{vG4}")
        e(f"    v_lshl_add_u32 v{vVR}, v{vA}, 8, v{vVR}")
        e(f"    v_and_b32 v{vB}, 3, v{vC4}")
        e(f"    v_lshl_add_u32 v{vVR}, v{vB}, 3, v{vVR}")
        e(f"    v_lshl_add_u32 v{vVR}, v{vA}, 5, v{vVR}")
        e(f"    s_lshl_b32 s{sT0}, s{sNB}, 16")
        e(f"    s_and_b32 s{sT0}, s{sT0}, {TOG}")
        e(f"    s_add_u32 s{sT2}, s{sT2}, s{sT0}")
        e(f"    v_add_u32 v{vVR}, s{sT2}, v{vVR}")
        for k in range(1, 4):
            e(f"    v_xor_b32 v{vVR+k}, {32*k}, v{vVR}")
        cm("addresses for the (m,l) table, the partial write and the combine read; output descriptor")
        e(f"    s_lshl_b32 s{sT0}, s{sW}, 3")
        e(f"    s_add_u32 s{sT0}, s{sT0}, {STB}")
        e(f"    v_lshl_add_u32 v{vSA}, v{vC4}, 6, s{sT0}")
        e(f"    s_mul_i32 s{sT0}, s{sW}, {OW}")
        e(f"    s_add_u32 s{sT0}, s{sT0}, {OBASE}")
        e(f"    v_mul_u32_u24 v{vWA}, {OSTR}, v{vC4}")
        e(f"    v_lshl_add_u32 v{vWA}, v{vG4}, 4, v{vWA}")
        e(f"    v_add_u32 v{vWA}, s{sT0}, v{vWA}")
        e(f"    v_lshrrev_b32 v{vA}, 4, v0")
        e(f"    v_mul_u32_u24 v{vRA}, {OSTR}, v{vA}")
        e(f"    v_lshl_add_u32 v{vRA}, v{vC4}, 5, v{vRA}")
        e(f"    v_add_u32 v{vRA}, {OBASE}, v{vRA}")
        e(f"    s_add_u32 s{SRD_O}, s{sOUT}, s{sT1}")
        e(f"    s_addc_u32 s{SRD_O+1}, s{sOUT+1}, 0")
        e(f"    s_mov_b32 s{SRD_O+2}, 4096")
        e(f"    s_mov_b32 s{SRD_O+3}, 0x00020000")
    e("    s_barrier")
    e("L_nobar0:")
    for m in range(4):
        e(f"    ds_read_b128 {r(vQ+4*m,4)}, v{(vWA, vRA)[m&1]} offset:{128*(m>>1)}")
    if not a.late: late_setup()

    def xlane_reduce(op, va, vb):
        e(f"    v_mov_b32 v{vb}, v{va}")
        e("    s_nop 1")
        e(f"    v_permlane32_swap_b32 v{va}, v{vb}")
        e(f"    {op} v{va}, v{va}, v{vb}")
        e(f"    v_mov_b32 v{vb}, v{va}")
        e("    s_nop 1")
        e(f"    v_permlane16_swap_b32 v{va}, v{vb}")
        e(f"    {op} v{va}, v{va}, v{vb}")

    vTR = 25
    def trace(lane):
        e("    s_memrealtime s[60:61]")
        e("    s_waitcnt lgkmcnt(0)")
        e(f"    v_writelane_b32 v{vTR}, s60, {lane}")
    def trace_dyn():
        e("    s_memrealtime s[60:61]")
        e("    s_lshr_b32 s62, s55, 1" if ST_ != 3 else "    s_min_u32 s62, s55, 34")
        e("    s_waitcnt lgkmcnt(0)")
        e("    s_mov_b32 m0, s62")
        e(f"    v_writelane_b32 v{vTR}, s60, m0")
        e("    s_add_u32 s55, s55, 1")
    if ST_:
        vAC[5] = 19 + 0
        e("    s_waitcnt lgkmcnt(0)")
        e(f"    v_mov_b32 v{vTR}, 0")
        for i, sg in enumerate((64, 66, 68, 70, 72) if ST_ == 3 else (64, 72)): e(f"    v_writelane_b32 v{vTR}, s{sg}, {i}")
        e("    s_getreg_b32 s60, hwreg(HW_REG_XCC_ID)")
        e(f"    v_writelane_b32 v{vTR}, s60, 38")
        e("    s_mov_b32 s55, 5")

    def kread(t):
        for m in range(4):
            e(f"    ds_read_b128 {r(vKF+4*m,4)}, v{vKR+(m&1)} offset:{t*4*SL + 128*(m>>1)}")
        if t == 1:
            for k in range(2): e(f"    v_xor_b32 v{vKR+k}, {TOG}, v{vKR+k}")
    def qk(t):
        for m in range(4):
            e(f"    s_waitcnt lgkmcnt({3-m})")
            cc = r(vBI+4*t, 4) if m == 0 else r(vS+4*t, 4)
            e(f"    v_mfma_f32_16x16x32_bf16 {r(vS+4*t,4)}, {r(vKF+4*m,4)}, {r(vQ+4*m,4)}, {cc}")
    def sm1():
        cm("running max over this block's 32 keys, rescale factor")
        e(f"    v_max3_f32 v{vA}, v{vS}, v{vS+1}, v{vS+2}")
        e(f"    v_max3_f32 v{vB}, v{vS+3}, v{vS+4}, v{vS+5}")
        e(f"    v_max3_f32 v{vA}, v{vA}, v{vS+6}, v{vS+7}")
        e(f"    v_max_f32 v{vA}, v{vA}, v{vB}")
        xlane_reduce("v_max_f32", vA, vB)
        e(f"    v_mul_f32 v{vA}, s{sC}, v{vA}")
        e(f"    v_max_f32 v{vA}, v{vA}, v{vM}")
        e(f"    v_sub_f32 v{vAL}, v{vM}, v{vA}")
        e(f"    v_mov_b32 v{vM}, v{vA}")
        e(f"    v_exp_f32 v{vAL}, v{vAL}")
    def sm2():
        cm("P = exp2(S*c - m), row sum, pack to bf16 and park (P, alpha)")
        for i in range(8): e(f"    v_fma_f32 v{vS+i}, v{vS+i}, s{sC}, -v{vM}")
        for i in range(8): e(f"    v_exp_f32 v{vS+i}, v{vS+i}")
        e(f"    v_add_f32 v{vA}, v{vS}, v{vS+1}")
        e(f"    v_add_f32 v{vB}, v{vS+2}, v{vS+3}")
        e(f"    v_fma_f32 v{vL}, v{vL}, v{vAL}, v{vA}")
        e(f"    v_add_f32 v{vA}, v{vS+4}, v{vS+5}")
        e(f"    v_add_f32 v{vL}, v{vL}, v{vB}")
        e(f"    v_add_f32 v{vB}, v{vS+6}, v{vS+7}")
        e(f"    v_add_f32 v{vL}, v{vL}, v{vA}")
        for p in range(4): e(f"    v_cvt_pk_bf16_f32 v{vP+p}, v{vS+2*p}, v{vS+2*p+1}")
        e(f"    v_add_f32 v{vL}, v{vL}, v{vB}")
        e(f"    s_set_gpr_idx_on s{sIDX}, gpr_idx(DST)")
        for p in range(4): e(f"    v_mov_b32 v{vST+p}, v{vP+p}")
        e(f"    v_mov_b32 v{vST+4}, v{vAL}")
        e("    s_set_gpr_idx_off")
        e(f"    s_add_u32 s{sIDX}, s{sIDX}, 5")
    t1 = {3: [publish, lambda: kread(0)], 4: [lambda: qk(0)], 5: [ground], 7: [lambda: kread(1)], 8: [lambda: qk(1)],
          9: [sm1], 10: [sm2, decide]}
    e("L_p1:")
    if ST_: trace_dyn()
    for s in range(S0, S0 + 8):
        pre_load(s)
        wait(s)
        n0 = len(L)
        load(s, True)
        if s - RS == 9:
            assert len(L) - n0 >= 5
        for t in t1.get(s - RS, []): t()
    e(f"    s_sub_u32 s{sCNT}, s{sCNT}, 1")
    e(f"    s_cmp_lg_u32 s{sCNT}, 0")
    e("    s_cbranch_scc1 L_p1")

    if a.late: late_setup()
    xlane_reduce("v_add_f32", vL, vB)
    e(f"    ds_write_b64 v{vSA}, {r(vM,2)}")
    for i in range(32): e(f"    v_mov_b32 v{vO+i}, 0")
    e(f"    v_lshrrev_b32 v{vA}, 4, v0")
    e(f"    v_lshlrev_b32 v{vA}, 6, v{vA}")
    e(f"    s_mov_b32 s{sIDX}, 0")
    e(f"    s_mov_b32 s{sCNT}, s{sNB}")
    e(f"    s_cmp_eq_u32 s{sW}, {NW}")
    e("    s_cselect_b64 exec, 0, -1")
    e("    s_waitcnt lgkmcnt(0)")
    e("    s_cbranch_scc1 L_nobar1")
    e("    s_barrier")
    e("L_nobar1:")
    ST = vVT
    for i in range(2):
        e(f"    ds_read_b128 {r(ST+4*i,4)}, v{vA} offset:{STB + 16*i}")
    e(f"    ds_read_b64 {r(ST+8,2)}, v{vA} offset:{STB + 32}")
    for x in range(2):
        e(f"    ds_read_b128 {r(ST+16+4*x,4)}, v{vRA} offset:{NW*OW + 16*x}")
    e("    s_waitcnt lgkmcnt(0)")
    e(f"    v_max3_f32 v{vA}, v{ST}, v{ST+2}, v{ST+4}")
    e(f"    v_max3_f32 v{vA}, v{vA}, v{ST+6}, v{ST+8}")
    for w in range(NP): e(f"    v_sub_f32 v{vF+w}, v{ST+2*w}, v{vA}")
    for w in range(NP): e(f"    v_exp_f32 v{vF+w}, v{vF+w}")
    e("    s_nop 0")
    e(f"    v_mul_f32 v{vB}, v{vF}, v{ST+1}")
    for w in range(1, NP): e(f"    v_fma_f32 v{vB}, v{vF+w}, v{ST+2*w+1}, v{vB}")
    e(f"    v_rcp_f32 v{vB}, v{vB}")
    e("    s_nop 0")
    for w in range(NP): e(f"    v_mul_f32 v{vF+w}, v{vF+w}, v{vB}")
    if ST_: vAC[5] = vF + 4
    for x in [0, 1, 2, 3, 4, 6, 7, 5]: e(f"    v_mul_f32 v{vAC[x]}, v{ST+16+x}, v{vF+4}")
    e("    s_mov_b64 exec, -1")

    def vread(t):
        for jd in range(8):
            e(f"    ds_read_b64_tr_b16 {r(vVT+4*jd+2*t,2)}, v{vVR+(jd&3)} offset:{t*4*SL + 128*(jd>>2)}")
        if t == 1:
            for k in range(4): e(f"    v_xor_b32 v{vVR+k}, {TOG}, v{vVR+k}")
    def pfetch():
        e(f"    s_set_gpr_idx_on s{sIDX}, gpr_idx(SRC0)")
        for p in range(4): e(f"    v_mov_b32 v{vP+p}, v{vST+p}")
        e(f"    v_mov_b32 v{vAL}, v{vST+4}")
        e("    s_set_gpr_idx_off")
        e(f"    s_add_u32 s{sIDX}, s{sIDX}, 5")
        e("    s_waitcnt lgkmcnt(0)")
    def resc(half):
        for i in range(16*half, 16*half+16): e(f"    v_mul_f32 v{vO+i}, v{vO+i}, v{vAL}")
    def mfma_pv(jd):
        e(f"    v_mfma_f32_16x16x32_bf16 {r(vO+4*jd,4)}, {r(vVT+4*jd,4)}, {r(vP,4)}, {r(vO+4*jd,4)}")
    def cnt():
        e(f"    s_sub_u32 s{sCNT}, s{sCNT}, 1")
        e(f"    s_cmp_eq_u32 s{sCNT}, 0")
    def pv():
        if not a.fast: cnt()
        for jd in range(8):
            e(f"    s_waitcnt lgkmcnt({7-jd})")
            mfma_pv(jd)
        if not a.fast: e("    s_cbranch_scc1 L_epi")
    t2 = {3: [publish, lambda: vread(0)], 4: [pfetch], 5: [lambda: resc(0)], 6: [lambda: resc(1)],
          7: [lambda: vread(1), pv], 8: [ground], 10: [decide]}
    if a.fast: t2[7] = [pv]
    e("L_p2:")
    if ST_: trace_dyn()
    for s in range(S0, S0 + 8):
        pre_load(s)
        if a.fast and s - RS == 7: cnt()
        wait(s)
        if a.fast and s - RS == 7:
            vread(1)
            e("    s_cbranch_scc1 L_epi")
        load(s, False)
        for t in t2.get(s - RS, []): t()
    e("    s_branch L_p2")

    e("L_epi:")
    e(f"    s_cmp_eq_u32 s{sW}, {NW}")
    e(f"    v_lshlrev_b32 v{vA}, 4, v0")
    wr = lambda jd: e(f"    ds_write_b128 v{vWA}, {r(vO+4*jd,4)} offset:{64*jd}")
    if a.fast:
        nw = 0
        for jd in range(8):
            e(f"    s_waitcnt lgkmcnt({7 - jd + nw})")
            mfma_pv(jd)
            if jd >= 4:
                wr(jd - 4); nw += 1
        e("    s_nop 0")
        wr(4); e("    s_nop 1"); wr(5); e("    s_nop 1"); wr(6); e("    s_nop 1"); wr(7)
    else:
        e("    s_nop 0")
        for jd in range(8): wr(jd)
    if ST_: trace(35)
    e("    s_cselect_b64 exec, 0, -1")
    e("    s_waitcnt lgkmcnt(0)")
    e("    s_cbranch_scc1 L_nobar2")
    e("    s_barrier")
    e("L_nobar2:")
    if ST_: trace(36)
    PB = vST
    for w in range(NW):
        for x in range(2):
            e(f"    ds_read_b128 {r(PB+8*w+4*x,4)}, v{vRA} offset:{w*OW + 16*x}")
    for w in range(NW):
        e(f"    s_waitcnt lgkmcnt({2*(NW-1-w)})")
        for x in range(8):
            acc = vAC[x] if w == 0 else vVT + x
            e(f"    v_fma_f32 v{vVT+x}, v{PB+8*w+x}, v{vF+w}, v{acc}")
    for x in range(4): e(f"    v_cvt_pk_bf16_f32 v{vP+x}, v{vVT+2*x}, v{vVT+2*x+1}")
    e("    s_cbranch_scc1 L_end")
    e(f"    buffer_store_dwordx4 {r(vP,4)}, v{vA}, {sr(SRD_O,4)}, 0 offen")
    if ST_:
        e("    s_waitcnt vmcnt(0)")
        trace(37)
        e("    s_load_dwordx2 s[4:5], s[0:1], 64")
        e(f"    s_lshl_b32 s{sT0}, s2, 10")
        e(f"    v_lshlrev_b32 v{vA}, 2, v0")
        e("    s_waitcnt lgkmcnt(0)")
        e(f"    s_mov_b32 s{SRD_Q}, s4")
        e(f"    s_mov_b32 s{SRD_Q+1}, s5")
        e(f"    s_mov_b32 s{SRD_Q+2}, 0x100000")
        e(f"    s_mov_b32 s{SRD_Q+3}, 0x00020000")
        e(f"    buffer_store_dword v{vTR}, v{vA}, {sr(SRD_Q,4)}, s{sT0} offen")
    e("L_end:")
    e("    s_endpgm")

    e("L_tree0:")
    fillq = [f"    s_lshr_b32 s{sT0}, {H}, 5", f"    s_lshl_b32 s{sT0}, s{sT0}, 9", f"    s_mov_b32 s{SRD_M+2}, 512", f"    s_mov_b32 s{SRD_M+3}, 0x00020000"]
    if a.qsplit:
        if a.tbar: e("    s_barrier")
        for x in fillq: e(x)
    else:
        e(f"    s_add_u32 s{SRD_Q}, s{sQ}, s{sT1}")
        e(f"    s_addc_u32 s{SRD_Q+1}, s{sQ+1}, 0")
        e(f"    s_mov_b32 s{SRD_Q+2}, 4096")
        e(f"    s_mov_b32 s{SRD_Q+3}, 0x00020000")
        for j in range(4):
            e(f"    s_mov_b32 m0, {QB + j*SL - 1024*j}")
            e(fillq[j])
            e(f"    buffer_load_dwordx4 v{vSRC}, {sr(SRD_Q,4)}, 0 offen offset:{1024*j} nt lds")
    e(f"    s_add_u32 s{SRD_M}, s{sMK}, s{sT0}")
    e(f"    s_addc_u32 s{SRD_M+1}, s{sMK+1}, 0")
    e(f"    v_lshlrev_b32 v{vA}, 5, v{vC4}")
    e(f"    v_lshl_add_u32 v{vA}, v{vG4}, 3, v{vA}")
    e(f"    buffer_load_dwordx2 {r(vP,2)}, v{vA}, {sr(SRD_M,4)}, 0 offen")
    e(f"    s_mov_b64 {sr(sKC,2)}, {sr(sKT,2)}")
    e(f"    s_mov_b64 {sr(sVC,2)}, {sr(sVT,2)}")
    e(f"    s_mov_b32 s{sT0}, s{sT1}")
    e(f"    s_mov_b32 s{SRD+2}, 4096")
    e(f"    s_mov_b32 s{sNB}, 1")
    if a.ix: e("    s_mov_b32 s63, 0\n    s_mov_b32 s61, 0")
    e(f"    v_mov_b32 v{vB}, 0")
    nt = 1
    if a.touch:
        cm("first touch of the other small buffers while the address translation misses overlap")
        e(f"    v_mov_b32 v{vA}, s{sT1}")
        e(f"    global_load_dword v{vST}, v{vA}, {sr(sKT,2)}")
        e(f"    global_load_dword v{vST+1}, v{vA}, {sr(sVT,2)}")
        e(f"    global_load_dword v{vST+2}, v{vB}, {sr(sDBG,2)} nt")
        nt += 3
    cm("every eighth workgroup clears the ranking counter of its round")
    e(f"    s_lshr_b32 s{sT2}, s2, 3")
    e(f"    s_mul_i32 s{sT2}, s{sT2}, {a.gstride}")
    if ST_: e(f"    s_add_u32 s{sT2}, s{sT2}, 0x200000")
    e(f"    v_mov_b32 v{vA}, s{sT2}")
    big = 1e9 * math.sqrt(128.0)
    e(f"    s_mov_b32 s{sT2}, {f32bits(big):#x}               ; 1e9 / D^-0.5")
    for i in range(4): e(f"    v_mov_b32 v{vBI+4+i}, 0xff800000")
    if not a.qsplit: e(f"    s_waitcnt vmcnt({nt})")
    if not (a.qsplit and a.tbar): e("    s_barrier")
    e("    s_and_b32 s60, s2, 7")
    e("    s_cbranch_scc1 L_noclr")
    e(f"    global_store_dword v{vA}, v{vB}, {sr(sWS,2)} sc0 sc1")
    e("L_noclr:")
    e("    s_waitcnt vmcnt(0)")
    e(f"    v_lshlrev_b32 v{vBI}, 16, v{vP}")
    e(f"    v_and_b32 v{vBI+1}, 0xffff0000, v{vP}")
    e(f"    v_lshlrev_b32 v{vBI+2}, 16, v{vP+1}")
    e(f"    v_and_b32 v{vBI+3}, 0xffff0000, v{vP+1}")
    e(f"    s_add_u32 m0, s{sLW}, {ORD[0]*SL - 1024*ORD[0]}")
    for i in range(4): e(f"    v_fma_f32 v{vBI+i}, v{vBI+i}, s{sT2}, -s{sT2}")
    e("    s_branch L_go")

    for n in stubs:
        e(f"L_gr{n}:")
        e(f"    s_mov_b32 s{sN}, 1")
        e(f"    s_atomic_add s{sN}, {sr(sWS,2)}, 0x0 glc")
        e(f"    v_lshl_add_u32 v{vA}, v{vLN}, 6, 32")
        e("    s_waitcnt lgkmcnt(0)")
        e(f"    s_min_u32 s{sN}, s{sN}, 7")
        e(f"    s_mul_i32 s{sN}, s{sN}, {a.gk}")
        e(f"    s_sub_u32 s{sN}, {a.th + (7*a.gk + 1)//2}, s{sN}")
        e(f"    s_xor_b32 s{sN}, s{sN}, {a.th}")
        e(f"    v_mov_b32 v{vB}, s{sN}")
        e(f"    buffer_store_byte v{vB}, v{vA}, {sr(SRD_D,4)}, 0 offen")
        e(f"    s_branch L_grb{n}")
    e('.section .rodata,"a"')
    e(".p2align 6")
    e(f".amdhsa_kernel {NAME}_kernel")
    e(f"  .amdhsa_next_free_vgpr {NV}")
    e(f"  .amdhsa_next_free_sgpr {76 if ST_ else 64}")
    e(f"  .amdhsa_accum_offset {NV}")
    e("  .amdhsa_group_segment_fixed_size 0")
    e("  .amdhsa_kernarg_size 72")
    e("  .amdhsa_user_sgpr_count 2")
    e("  .amdhsa_user_sgpr_kernarg_segment_ptr 1")
    e("  .amdhsa_system_sgpr_workgroup_id_x 1")
    e(".end_amdhsa_kernel")
    return "\n".join(L) + "\n"

def parser():
    ap = argparse.ArgumentParser()
    ap.add_argument("--r", type=int, default=5)
    ap.add_argument("--r2", type=int, default=6)
    ap.add_argument("--th", type=int, default=20)
    ap.add_argument("--gp", type=int, default=3)
    ap.add_argument("--g0", type=int, default=4)
    ap.add_argument("--gn", type=int, default=19)
    ap.add_argument("--gk", type=int, default=3)
    ap.add_argument("--gstride", type=int, default=4352)
    ap.add_argument("--wsh", type=int, default=13)
    ap.add_argument("--t1off", type=int, default=4096)
    ap.add_argument("--ord", type=int, default=0)
    ap.add_argument("--hx", type=int, default=4)
    ap.add_argument("--hm", type=int, default=7)
    ap.add_argument("--hp", type=lambda x: [int(y) for y in x.split(",")], default=[])
    ap.add_argument("--ix", type=int, default=0)
    ap.add_argument("--ixs", type=int, default=3)
    ap.add_argument("--ixl", type=int, default=0)
    ap.add_argument("--fast", type=int, default=1)
    ap.add_argument("--touch", type=int, default=0)
    ap.add_argument("--late", type=int, default=1)
    ap.add_argument("--qsplit", type=int, default=1)
    ap.add_argument("--qpos", type=int, default=2)
    ap.add_argument("--tbar", type=int, default=0)
    ap.add_argument("--stamp", type=int, default=0)
    ap.add_argument("-o", default="/dev/stdout")
    return ap
if __name__ == "__main__":
    a = parser().parse_args()
    open(a.o, "w").write(gen(a))
```

```python
import argparse, struct, math
from gen import NAME, HEADER, f32bits

DOC = """;
"""

def gen(a):
    NW, NP, NBLK = 4, 5, 32
    R, R2 = a.r, a.r2
    RS = R2
    assert RS == 6 and a.qpos <= 3
    L = []; e = L.append
    cm = lambda t: e(f"    ; {t}")
    sQ, sKC, sVC, sKT, sVT, sMK, sOUT, sDBG = 4, 6, 8, 10, 12, 14, 16, 18
    SRD, sVB, sWS, SRD_Q, SRD_O, SRD_D, SRD_M = 20, 24, 26, 28, 32, 36, 56
    sW, sO0, sO1, sCNT, sC, sREM, sIDX, sT0, sT1, sNB, sLW, sT2, sRND, sN, sTH = 40, 41, 42, 43, 44, 45, 46, 47, 48, 49, 50, 51, 54, 52, 53
    vSRC, vKR, vM, vL, vA, vB, vAL, vWA, vRA, vSA, vVR, vP, vF = 1, 2, 4, 5, 6, 7, 8, 9, 10, 11, 12, 16, 20
    vDT, vOWN, vLN, vC4, vG4, vDO = 26, 27, 28, 29, 30, 31
    vAC = [2, 3, 4, 5, 11, 25, 29, 30]
    vO, vVT, vST = 32, 64, 96
    vQ, vKF, vS, vBI = 32, 48, 64, 72
    vTR = 95 if False else None
    NV = 256
    r = lambda b, n: f"v[{b}:{b+n-1}]"
    sr = lambda b, n: f"s[{b}:{b+n-1}]"
    SL = 1152
    HALF = 8 * SL
    TOG = 65536
    STB = NP * HALF
    QB = STB + 1024
    OBASE = TOG + NP * HALF
    OSTR, OW = 528, 16 * 528
    LDS = OBASE + NP * OW
    STEP = NW * 8192
    S0 = RS + 3
    ORD = {0: [0, 2, 1, 3, 4, 6, 5, 7], 1: [0, 1, 2, 3, 4, 5, 6, 7], 2: [2, 0, 1, 3, 6, 4, 5, 7], 3: [1, 2, 0, 3, 5, 6, 4, 7]}[a.ord]
    lab = [0]
    stubs = []
    ST_ = a.stamp

    e(HEADER.rstrip())
    e(f"; @launch grid=(256,1,1) block=(320,1,1) lds={LDS}")
    e(DOC.rstrip())
    e('.amdgcn_target "amdgcn-amd-amdhsa--gfx950"')
    e(".text")
    e(f".globl {NAME}_kernel")
    e(".p2align 8")
    e(f".type {NAME}_kernel,@function")
    e(f"{NAME}_kernel:")
    if ST_: e("    s_memrealtime s[64:65]")
    e("    s_load_dwordx16 s[4:19], s[0:1], 0")
    e(f"    s_load_dwordx2 {sr(sWS,2)}, s[0:1], 64")
    e(f"    v_lshrrev_b32 v{vA}, 6, v0")
    e(f"    v_and_b32 v{vC4}, 15, v0                    ; c = lane & 15")
    e(f"    v_readfirstlane_b32 s{sW}, v{vA}")
    e(f"    v_bfe_u32 v{vG4}, v0, 4, 2                  ; g = lane >> 4")
    e("    s_cmp_ge_u32 s2, 256")
    e("    s_cbranch_scc1 L_end")
    cm("DMA source offset: row g, 16-B chunk c ^ 2g (swizzle makes both fragment read patterns conflict free)")
    e(f"    v_lshlrev_b32 v{vA}, 1, v{vG4}")
    e(f"    v_xor_b32 v{vA}, v{vA}, v{vC4}")
    e(f"    v_lshlrev_b32 v{vA}, 4, v{vA}")
    e(f"    v_lshl_add_u32 v{vSRC}, v{vG4}, 8, v{vA}")
    if a.hm:
        e(f"    s_lshr_b32 s3, s2, {a.hx}") if a.hx > 0 else e(f"    s_lshl_b32 s3, s2, {-a.hx}")
        e(f"    s_and_b32 s3, s3, {a.hm}")
        e("    s_xor_b32 s3, s3, s2")
    if a.hp:
        e("    s_mov_b32 s3, s2")
        for i, mk in enumerate(a.hp):
            if not mk: continue
            e(f"    s_and_b32 s60, s2, {mk << 3}")
            e("    s_bcnt1_i32_b32 s60, s60")
            e("    s_and_b32 s60, s60, 1")
            if i: e(f"    s_lshl_b32 s60, s60, {i}")
            e("    s_xor_b32 s3, s3, s60")
    H = "s3" if (a.hm or a.hp) else "s2"
    e(f"    s_lshl_b32 s{sT0}, {H}, 20")
    e(f"    s_lshl_b32 s{sO0}, s{sW}, {a.wsh}")
    e(f"    s_lshl_b32 s{sT1}, {H}, 12")
    e(f"    s_add_u32 s{sT0}, s{sT0}, s{sO0}")
    e(f"    s_sub_u32 s{SRD+2}, 0x100000, s{sO0}")
    e(f"    s_mul_i32 s{sLW}, s{sW}, {HALF}")
    e(f"    s_mov_b32 s{SRD+3}, 0x00020000")
    e(f"    s_mov_b32 s{sO0}, 0")
    e(f"    s_mov_b32 s{sNB}, {NBLK}")
    if a.ix:
        e(f"    s_lshr_b32 s63, s2, {a.ixs}")
        e(f"    s_lshl_b32 s63, s63, {15 + a.ixl}")
        e(f"    s_and_b32 s63, s63, {a.ix << 15}")
        e("    s_mov_b32 s61, s63")
    if a.qsplit:
        e(f"    s_mov_b32 s{SRD_Q+2}, 4096")
        e(f"    s_mov_b32 s{SRD_Q+3}, 0x00020000")
    e(f"    s_add_u32 m0, s{sLW}, {ORD[0]*SL - 1024*ORD[0]}")
    e(f"    s_cmp_eq_u32 s{sW}, {NW}")
    e("    s_waitcnt lgkmcnt(0)")
    if ST_: e("    s_memrealtime s[66:67]")
    if a.tbar == 2:
        e("    s_cbranch_scc0 L_go")
        e("    s_barrier")
        e("    s_branch L_tree0")
    else:
        e("    s_cbranch_scc1 L_tree0")
    e("L_go:")
    e(f"    s_add_u32 s{SRD}, s{sKC}, s{sT0}")
    e(f"    s_addc_u32 s{SRD+1}, s{sKC+1}, 0")

    def pre_load(s):
        j = ORD[s % 8]
        e(f"    s_add_u32 m0, s{sLW}, {j*SL - 1024*(j&3)}")
    def load(s, switch):
        j = ORD[s % 8]
        sE0 = 61 if a.ix else sO0
        so = sE0 if j < 4 else sO1
        e(f"    buffer_load_dwordx4 v{vSRC}, {sr(SRD,4)}, s{so} offen offset:{1024*(j&3)} nt lds")
        if j == 3:
            e(f"    s_add_u32 s{sO1}, s{sE0}, {a.t1off}")
        if j == 7:
            e(f"    s_add_u32 s{sO0}, s{sO0}, {STEP}")
            e(f"    s_xor_b32 s{sLW}, s{sLW}, {TOG}")
            if switch:
                e(f"    s_sub_u32 s{sREM}, s{sREM}, 1")
                e(f"    s_cmp_eq_u32 s{sREM}, 0")
                e(f"    s_cselect_b64 {sr(SRD,2)}, {sr(sVB,2)}, {sr(SRD,2)}")
                e(f"    s_cselect_b32 s{sO0}, 0, s{sO0}")
            if a.ix: e(f"    s_xor_b32 s61, s{sO0}, s63")
    def cnt_for(ring, k):
        rel = (k - S0) % 8
        return ring - 1 + (2 if 1 <= rel <= ring else 0)
    def wait(k):
        rel = (k - S0) % 8
        lab[0] += 1
        e(f"    s_cbranch_vccnz L_b{lab[0]}")
        e(f"    s_waitcnt vmcnt({cnt_for(R-1 if rel == 0 else R, k)})")
        e(f"L_b{lab[0]}:")
        e(f"    s_waitcnt vmcnt({cnt_for(R2, k) - (1 if rel == 4 else 0)})")
    def publish():
        e(f"    v_add_u32 v{vOWN}, 1, v{vOWN}")
        e(f"    buffer_store_byte v{vOWN}, v{vDO}, {sr(SRD_D,4)}, 0 offen")
        e(f"    buffer_load_ubyte v{vDT}, v{vLN}, {sr(SRD_D,4)}, 0 offen nt")
    def ground():
        n = len(stubs); stubs.append(n)
        e(f"    s_sub_u32 s{sRND}, s{sRND}, 1")
        e(f"    s_cmp_eq_u32 s{sRND}, 0")
        e(f"    s_cbranch_scc1 L_gr{n}")
        e(f"L_grb{n}:")
    def decide():
        e(f"    v_cmp_ge_u32 vcc, v{vDT}, v{vOWN}")
        e(f"    v_readlane_b32 s{sTH}, v{vDT}, 32")
        e(f"    s_bcnt1_i32_b32 s{sN}, vcc_lo")
        e(f"    s_xor_b32 s{sTH}, s{sTH}, {a.th}")
        e(f"    s_cmp_gt_u32 s{sN}, s{sTH}")
        e("    s_cselect_b64 vcc, -1, 0")

    QPOS = a.qpos
    for s in range(R):
        if s == QPOS and a.qsplit:
            cm("each streaming wave stages 4 rows of Q (the tree wave's offset is out of range)")
            e(f"    s_add_u32 s{SRD_Q}, s{sQ}, s{sT1}")
            e(f"    s_addc_u32 s{SRD_Q+1}, s{sQ+1}, 0")
            e(f"    s_mul_i32 s{sT2}, s{sW}, {SL}")
            e(f"    s_add_u32 m0, s{sT2}, {QB}")
            e(f"    s_lshl_b32 s{sT2}, s{sW}, 10")
            e(f"    buffer_load_dwordx4 v{vSRC}, {sr(SRD_Q,4)}, s{sT2} offen nt lds")
        if s > 0:
            pre_load(s)
            e("    s_nop 0" if s != 1 else f"    s_mov_b32 s{sREM}, s{sNB}")
        load(s, True)
    e(f"    s_add_u32 s{sVB}, s{sVC}, s{sT0}")
    e(f"    s_addc_u32 s{sVB+1}, s{sVC+1}, 0")
    cm("K / Q fragment read addresses: slot c>>2, row r = c&3, chunk (4m+g) ^ 2r")
    e(f"    s_mul_i32 s{sT2}, s{sW}, {HALF}")
    e(f"    v_lshrrev_b32 v{vA}, 2, v{vC4}")
    e(f"    v_mul_u32_u24 v{vKR}, {SL}, v{vA}")
    e(f"    v_and_b32 v{vB}, 3, v{vC4}")
    e(f"    v_lshl_add_u32 v{vKR}, v{vB}, 8, v{vKR}")
    e(f"    v_lshlrev_b32 v{vB}, 1, v{vB}")
    e(f"    v_xor_b32 v{vB}, v{vB}, v{vG4}")
    e(f"    v_lshl_add_u32 v{vKR}, v{vB}, 4, v{vKR}")
    e(f"    v_add_u32 v{vWA}, {QB}, v{vKR}")
    e(f"    v_add_u32 v{vKR}, s{sT2}, v{vKR}")
    e(f"    v_xor_b32 v{vRA}, 64, v{vWA}")
    e(f"    v_xor_b32 v{vKR+1}, 64, v{vKR}")
    c = (128 ** -0.5) * math.log2(math.e)
    e(f"    s_mov_b32 s{sC}, {f32bits(c):#x}               ; D^-0.5 * log2(e)")
    e(f"    v_mov_b32 v{vM}, 0xff800000")
    e(f"    v_mov_b32 v{vL}, 0")
    e(f"    s_mov_b32 s{sIDX}, 0")
    e(f"    s_mov_b32 s{sCNT}, s{sNB}")
    e("    s_mov_b64 vcc, 0")
    e(f"    s_add_u32 s{SRD_O}, s{sOUT}, s{sT1}")
    e(f"    s_addc_u32 s{SRD_O+1}, s{sOUT+1}, 0")
    e(f"    s_mov_b32 s{SRD_O+2}, 4096")
    e(f"    s_mov_b32 s{SRD_O+3}, 0x00020000")
    cm("progress table in d_debug: byte wg>>3 = iteration reached, byte 32 = threshold hint")
    e(f"    s_mov_b32 s{SRD_D}, s{sDBG}")
    e(f"    s_mov_b32 s{SRD_D+1}, s{sDBG+1}")
    e(f"    s_mov_b32 s{SRD_D+2}, 36")
    e(f"    s_mov_b32 s{SRD_D+3}, 0x00020000")
    e(f"    s_lshr_b32 s{sT0}, s2, 3")
    e(f"    v_and_b32 v{vLN}, 63, v0")
    e(f"    v_lshl_add_u32 v{vDO}, v0, 6, s{sT0}")
    e(f"    v_mov_b32 v{vOWN}, 1")
    e(f"    s_mul_i32 s{sRND}, s{sT0}, {a.gp}")
    e(f"    s_add_u32 s{sRND}, s{sRND}, {a.g0}")
    e(f"    s_cmp_lt_u32 s{sT0}, {a.gn}")
    e(f"    s_cselect_b32 s{sRND}, s{sRND}, 0")
    e(f"    s_cmp_eq_u32 s{sW}, 1")
    e(f"    s_cselect_b32 s{sRND}, s{sRND}, 0")
    e(f"    s_mul_i32 s{sT0}, s{sT0}, {a.gstride}")
    e(f"    s_add_u32 s{sWS}, s{sWS}, s{sT0}")
    e(f"    s_addc_u32 s{sWS+1}, s{sWS+1}, 0")
    if ST_: e(f"    s_add_u32 s{sWS}, s{sWS}, 0x200000\n    s_addc_u32 s{sWS+1}, s{sWS+1}, 0")
    for s in range(R, S0):
        pre_load(s)
        if ST_ and s == R: e("    s_memrealtime s[68:69]")
        e(f"    s_waitcnt vmcnt({R - 1 + (1 if (a.qsplit and s - R < QPOS) else 0)})")
        if ST_ and s == R: e("    s_memrealtime s[70:71]")
        load(s, True)
    if ST_: e("    s_memrealtime s[72:73]")
    e(f"    s_cmp_eq_u32 s{sW}, {NW}")
    e("    s_cbranch_scc1 L_nobar0")
    for i in range(8): e(f"    v_mov_b32 v{vBI+i}, 0")
    if a.late:
        pass
    def late_setup():
        cm("V transposing-read addresses: slot g, row r = c>>2, byte ((jd ^ r) * 32) + (c&3) * 8")
        e(f"    v_lshrrev_b32 v{vA}, 2, v{vC4}")
        e(f"    v_mul_u32_u24 v{vVR}, {SL}, v{vG4}")
        e(f"    v_lshl_add_u32 v{vVR}, v{vA}, 8, v{vVR}")
        e(f"    v_and_b32 v{vB}, 3, v{vC4}")
        e(f"    v_lshl_add_u32 v{vVR}, v{vB}, 3, v{vVR}")
        e(f"    v_lshl_add_u32 v{vVR}, v{vA}, 5, v{vVR}")
        e(f"    s_lshl_b32 s{sT0}, s{sNB}, 16")
        e(f"    s_and_b32 s{sT0}, s{sT0}, {TOG}")
        e(f"    s_add_u32 s{sT2}, s{sT2}, s{sT0}")
        e(f"    v_add_u32 v{vVR}, s{sT2}, v{vVR}")
        for k in range(1, 4):
            e(f"    v_xor_b32 v{vVR+k}, {32*k}, v{vVR}")
        cm("addresses for the (m,l) table, the partial write and the combine read")
        e(f"    s_lshl_b32 s{sT0}, s{sW}, 3")
        e(f"    s_add_u32 s{sT0}, s{sT0}, {STB}")
        e(f"    v_lshl_add_u32 v{vSA}, v{vC4}, 6, s{sT0}")
        e(f"    s_mul_i32 s{sT0}, s{sW}, {OW}")
        e(f"    s_add_u32 s{sT0}, s{sT0}, {OBASE}")
        e(f"    v_mul_u32_u24 v{vWA}, {OSTR}, v{vC4}")
        e(f"    v_lshl_add_u32 v{vWA}, v{vG4}, 4, v{vWA}")
        e(f"    v_add_u32 v{vWA}, s{sT0}, v{vWA}")
        e(f"    v_lshrrev_b32 v{vA}, 4, v0")
        e(f"    v_mul_u32_u24 v{vRA}, {OSTR}, v{vA}")
        e(f"    v_lshl_add_u32 v{vRA}, v{vC4}, 5, v{vRA}")
        e(f"    v_add_u32 v{vRA}, {OBASE}, v{vRA}")
    e("    s_barrier")
    e("L_nobar0:")
    for m in range(4):
        e(f"    ds_read_b128 {r(vQ+4*m,4)}, v{(vWA, vRA)[m&1]} offset:{128*(m>>1)}")
    if not a.late: late_setup()

    def xlane_reduce(op, va, vb):
        e(f"    v_mov_b32 v{vb}, v{va}")
        e("    s_nop 1")
        e(f"    v_permlane32_swap_b32 v{va}, v{vb}")
        e(f"    {op} v{va}, v{va}, v{vb}")
        e(f"    v_mov_b32 v{vb}, v{va}")
        e("    s_nop 1")
        e(f"    v_permlane16_swap_b32 v{va}, v{vb}")
        e(f"    {op} v{va}, v{va}, v{vb}")

    vTR = 25
    def trace(lane):
        e("    s_memrealtime s[60:61]")
        e("    s_waitcnt lgkmcnt(0)")
        e(f"    v_writelane_b32 v{vTR}, s60, {lane}")
    def trace_dyn():
        e("    s_memrealtime s[60:61]")
        e("    s_lshr_b32 s62, s55, 1" if ST_ != 3 else "    s_min_u32 s62, s55, 34")
        e("    s_waitcnt lgkmcnt(0)")
        e("    s_mov_b32 m0, s62")
        e(f"    v_writelane_b32 v{vTR}, s60, m0")
        e("    s_add_u32 s55, s55, 1")
    if ST_:
        vAC[5] = 19 + 0
        e("    s_waitcnt lgkmcnt(0)")
        e(f"    v_mov_b32 v{vTR}, 0")
        for i, sg in enumerate((64, 66, 68, 70, 72) if ST_ == 3 else (64, 72)): e(f"    v_writelane_b32 v{vTR}, s{sg}, {i}")
        e("    s_getreg_b32 s60, hwreg(HW_REG_XCC_ID)")
        e(f"    v_writelane_b32 v{vTR}, s60, 38")
        e("    s_mov_b32 s55, 5")

    def kread(t):
        for m in range(4):
            e(f"    ds_read_b128 {r(vKF+4*m,4)}, v{vKR+(m&1)} offset:{t*4*SL + 128*(m>>1)}")
        if t == 1:
            for k in range(2): e(f"    v_xor_b32 v{vKR+k}, {TOG}, v{vKR+k}")
    def qk(t):
        for m in range(4):
            e(f"    s_waitcnt lgkmcnt({3-m})")
            cc = r(vBI+4*t, 4) if m == 0 else r(vS+4*t, 4)
            e(f"    v_mfma_f32_16x16x32_bf16 {r(vS+4*t,4)}, {r(vKF+4*m,4)}, {r(vQ+4*m,4)}, {cc}")
    def sm1():
        cm("running max over this block's 32 keys, rescale factor")
        e(f"    v_max3_f32 v{vA}, v{vS}, v{vS+1}, v{vS+2}")
        e(f"    v_max3_f32 v{vB}, v{vS+3}, v{vS+4}, v{vS+5}")
        e(f"    v_max3_f32 v{vA}, v{vA}, v{vS+6}, v{vS+7}")
        e(f"    v_max_f32 v{vA}, v{vA}, v{vB}")
        xlane_reduce("v_max_f32", vA, vB)
        e(f"    v_mul_f32 v{vA}, s{sC}, v{vA}")
        e(f"    v_max_f32 v{vA}, v{vA}, v{vM}")
        e(f"    v_sub_f32 v{vAL}, v{vM}, v{vA}")
        e(f"    v_mov_b32 v{vM}, v{vA}")
        e(f"    v_exp_f32 v{vAL}, v{vAL}")
    def sm2():
        cm("P = exp2(S*c - m), row sum, pack to bf16 and park (P, alpha)")
        for i in range(8): e(f"    v_fma_f32 v{vS+i}, v{vS+i}, s{sC}, -v{vM}")
        for i in range(8): e(f"    v_exp_f32 v{vS+i}, v{vS+i}")
        e(f"    v_add_f32 v{vA}, v{vS}, v{vS+1}")
        e(f"    v_add_f32 v{vB}, v{vS+2}, v{vS+3}")
        e(f"    v_fma_f32 v{vL}, v{vL}, v{vAL}, v{vA}")
        e(f"    v_add_f32 v{vA}, v{vS+4}, v{vS+5}")
        e(f"    v_add_f32 v{vL}, v{vL}, v{vB}")
        e(f"    v_add_f32 v{vB}, v{vS+6}, v{vS+7}")
        e(f"    v_add_f32 v{vL}, v{vL}, v{vA}")
        for p in range(4): e(f"    v_cvt_pk_bf16_f32 v{vP+p}, v{vS+2*p}, v{vS+2*p+1}")
        e(f"    v_add_f32 v{vL}, v{vL}, v{vB}")
        e(f"    s_set_gpr_idx_on s{sIDX}, gpr_idx(DST)")
        for p in range(4): e(f"    v_mov_b32 v{vST+p}, v{vP+p}")
        e(f"    v_mov_b32 v{vST+4}, v{vAL}")
        e("    s_set_gpr_idx_off")
        e(f"    s_add_u32 s{sIDX}, s{sIDX}, 5")
    t1 = {3: [publish, lambda: kread(0)], 4: [lambda: qk(0)], 5: [ground], 7: [lambda: kread(1)], 8: [lambda: qk(1)],
          9: [sm1], 10: [sm2, decide]}
    def once():
        e(f"    s_cmp_eq_u32 s{sCNT}, s{sNB}")
        e("    s_cbranch_scc1 L_once")
        e("L_onceb:")
    if a.late == 2: t1[6] = [once]
    e("L_p1:")
    if ST_: trace_dyn()
    for s in range(S0, S0 + 8):
        pre_load(s)
        wait(s)
        n0 = len(L)
        load(s, True)
        if s - RS == 9:
            assert len(L) - n0 >= 5
        for t in t1.get(s - RS, []): t()
    e(f"    s_sub_u32 s{sCNT}, s{sCNT}, 1")
    e(f"    s_cmp_lg_u32 s{sCNT}, 0")
    e("    s_cbranch_scc1 L_p1")

    if a.late == 1: late_setup()
    xlane_reduce("v_add_f32", vL, vB)
    e(f"    ds_write_b64 v{vSA}, {r(vM,2)}")
    if not a.legacy:
        for i in range(32): e(f"    v_mov_b32 v{vO+i}, 0")
    e(f"    v_lshrrev_b32 v{vA}, 4, v0")
    e(f"    v_lshlrev_b32 v{vA}, 6, v{vA}")
    e(f"    s_mov_b32 s{sIDX}, 0")
    e(f"    s_mov_b32 s{sCNT}, s{sNB}")
    e(f"    s_cmp_eq_u32 s{sW}, {NW}")
    e("    s_cselect_b64 exec, 0, -1")
    e("    s_waitcnt lgkmcnt(0)")
    e("    s_cbranch_scc1 L_nobar1")
    e("    s_barrier")
    e("L_nobar1:")
    ST = vVT
    for i in range(2):
        e(f"    ds_read_b128 {r(ST+4*i,4)}, v{vA} offset:{STB + 16*i}")
    e(f"    ds_read_b64 {r(ST+8,2)}, v{vA} offset:{STB + 32}")
    for x in range(2):
        e(f"    ds_read_b128 {r(ST+16+4*x,4)}, v{vRA} offset:{NW*OW + 16*x}")
    e("    s_waitcnt lgkmcnt(0)")
    e(f"    v_max3_f32 v{vA}, v{ST}, v{ST+2}, v{ST+4}")
    e(f"    v_max3_f32 v{vA}, v{vA}, v{ST+6}, v{ST+8}")
    for w in range(NP): e(f"    v_sub_f32 v{vF+w}, v{ST+2*w}, v{vA}")
    for w in range(NP): e(f"    v_exp_f32 v{vF+w}, v{vF+w}")
    e("    s_nop 0")
    e(f"    v_mul_f32 v{vB}, v{vF}, v{ST+1}")
    for w in range(1, NP): e(f"    v_fma_f32 v{vB}, v{vF+w}, v{ST+2*w+1}, v{vB}")
    e(f"    v_rcp_f32 v{vB}, v{vB}")
    e("    s_nop 0")
    for w in range(NP): e(f"    v_mul_f32 v{vF+w}, v{vF+w}, v{vB}")
    if ST_: vAC[5] = vF + 4
    for x in [0, 1, 2, 3, 4, 6, 7, 5]: e(f"    v_mul_f32 v{vAC[x]}, v{ST+16+x}, v{vF+4}")
    e("    s_mov_b64 exec, -1")

    def vread(t):
        for jd in range(8):
            e(f"    ds_read_b64_tr_b16 {r(vVT+4*jd+2*t,2)}, v{vVR+(jd&3)} offset:{t*4*SL + 128*(jd>>2)}")
        if t == 1:
            for k in range(4): e(f"    v_xor_b32 v{vVR+k}, {TOG}, v{vVR+k}")
    def pfetch():
        e(f"    s_set_gpr_idx_on s{sIDX}, gpr_idx(SRC0)")
        for p in range(4): e(f"    v_mov_b32 v{vP+p}, v{vST+p}")
        e(f"    v_mov_b32 v{vAL}, v{vST+4}")
        e("    s_set_gpr_idx_off")
        e(f"    s_add_u32 s{sIDX}, s{sIDX}, 5")
        e("    s_waitcnt lgkmcnt(0)")
    def resc(half):
        if a.legacy and half == 0: cm("0 * x = 0 form: the first block's factor exp2(-inf) also clears the accumulators")
        op = "v_mul_legacy_f32" if a.legacy else "v_mul_f32"
        for i in range(16*half, 16*half+16): e(f"    {op} v{vO+i}, v{vO+i}, v{vAL}")
    def mfma_pv(jd):
        e(f"    v_mfma_f32_16x16x32_bf16 {r(vO+4*jd,4)}, {r(vVT+4*jd,4)}, {r(vP,4)}, {r(vO+4*jd,4)}")
    def cnt():
        e(f"    s_sub_u32 s{sCNT}, s{sCNT}, 1")
        e(f"    s_cmp_eq_u32 s{sCNT}, 0")
    def pv():
        if not a.fast: cnt()
        for jd in range(8):
            e(f"    s_waitcnt lgkmcnt({7-jd})")
            mfma_pv(jd)
        if not a.fast: e("    s_cbranch_scc1 L_epi")
    t2 = {3: [publish, lambda: vread(0)], 4: [pfetch], 5: [lambda: resc(0)], 6: [lambda: resc(1)],
          7: [lambda: vread(1), pv], 8: [ground], 10: [decide]}
    if a.fast: t2[7] = [pv]
    e("L_p2:")
    if ST_: trace_dyn()
    for s in range(S0, S0 + 8):
        pre_load(s)
        if a.fast and s - RS == 7: cnt()
        wait(s)
        if a.fast and s - RS == 7:
            vread(1)
            e("    s_cbranch_scc1 L_epi")
        load(s, False)
        for t in t2.get(s - RS, []): t()
    e("    s_branch L_p2")

    e("L_epi:")
    e(f"    s_cmp_eq_u32 s{sW}, {NW}")
    e(f"    v_lshlrev_b32 v{vA}, 4, v0")
    wr = lambda jd: e(f"    ds_write_b128 v{vWA}, {r(vO+4*jd,4)} offset:{64*jd}")
    if a.fast:
        nw = 0
        for jd in range(8):
            e(f"    s_waitcnt lgkmcnt({7 - jd + nw})")
            mfma_pv(jd)
            if jd >= 4:
                wr(jd - 4); nw += 1
        e("    s_nop 0")
        wr(4); e("    s_nop 1"); wr(5); e("    s_nop 1"); wr(6); e("    s_nop 1"); wr(7)
    else:
        e("    s_nop 0")
        for jd in range(8): wr(jd)
    if ST_: trace(35)
    e("    s_cselect_b64 exec, 0, -1")
    e("    s_waitcnt lgkmcnt(0)")
    e("    s_cbranch_scc1 L_nobar2")
    e("    s_barrier")
    e("L_nobar2:")
    if ST_: trace(36)
    PB = vST
    for w in range(NW):
        for x in range(2):
            e(f"    ds_read_b128 {r(PB+8*w+4*x,4)}, v{vRA} offset:{w*OW + 16*x}")
    for w in range(NW):
        e(f"    s_waitcnt lgkmcnt({2*(NW-1-w)})")
        for x in range(8):
            acc = vAC[x] if w == 0 else vVT + x
            e(f"    v_fma_f32 v{vVT+x}, v{PB+8*w+x}, v{vF+w}, v{acc}")
    for x in range(4): e(f"    v_cvt_pk_bf16_f32 v{vP+x}, v{vVT+2*x}, v{vVT+2*x+1}")
    e("    s_cbranch_scc1 L_end")
    e(f"    buffer_store_dwordx4 {r(vP,4)}, v{vA}, {sr(SRD_O,4)}, 0 offen")
    if ST_:
        e("    s_waitcnt vmcnt(0)")
        trace(37)
        e("    s_load_dwordx2 s[4:5], s[0:1], 64")
        e(f"    s_lshl_b32 s{sT0}, s2, 10")
        e(f"    v_lshlrev_b32 v{vA}, 2, v0")
        e("    s_waitcnt lgkmcnt(0)")
        e(f"    s_mov_b32 s{SRD_Q}, s4")
        e(f"    s_mov_b32 s{SRD_Q+1}, s5")
        e(f"    s_mov_b32 s{SRD_Q+2}, 0x100000")
        e(f"    s_mov_b32 s{SRD_Q+3}, 0x00020000")
        e(f"    buffer_store_dword v{vTR}, v{vA}, {sr(SRD_Q,4)}, s{sT0} offen")
    e("L_end:")
    e("    s_endpgm")

    e("L_tree0:")
    fillq = [f"    s_lshr_b32 s{sT0}, {H}, 5", f"    s_lshl_b32 s{sT0}, s{sT0}, 9", f"    s_mov_b32 s{SRD_M+2}, 512", f"    s_mov_b32 s{SRD_M+3}, 0x00020000"]
    if a.qsplit:
        if a.tbar == 1: e("    s_barrier")
        for x in fillq: e(x)
    else:
        e(f"    s_add_u32 s{SRD_Q}, s{sQ}, s{sT1}")
        e(f"    s_addc_u32 s{SRD_Q+1}, s{sQ+1}, 0")
        e(f"    s_mov_b32 s{SRD_Q+2}, 4096")
        e(f"    s_mov_b32 s{SRD_Q+3}, 0x00020000")
        for j in range(4):
            e(f"    s_mov_b32 m0, {QB + j*SL - 1024*j}")
            e(fillq[j])
            e(f"    buffer_load_dwordx4 v{vSRC}, {sr(SRD_Q,4)}, 0 offen offset:{1024*j} nt lds")
    e(f"    s_add_u32 s{SRD_M}, s{sMK}, s{sT0}")
    e(f"    s_addc_u32 s{SRD_M+1}, s{sMK+1}, 0")
    e(f"    v_lshlrev_b32 v{vA}, 5, v{vC4}")
    e(f"    v_lshl_add_u32 v{vA}, v{vG4}, 3, v{vA}")
    e(f"    buffer_load_dwordx2 {r(vP,2)}, v{vA}, {sr(SRD_M,4)}, 0 offen")
    e(f"    s_mov_b64 {sr(sKC,2)}, {sr(sKT,2)}")
    e(f"    s_mov_b64 {sr(sVC,2)}, {sr(sVT,2)}")
    e(f"    s_mov_b32 s{sT0}, s{sT1}")
    e(f"    s_mov_b32 s{SRD+2}, 4096")
    e(f"    s_mov_b32 s{sNB}, 1")
    if a.ix: e("    s_mov_b32 s63, 0\n    s_mov_b32 s61, 0")
    e(f"    v_mov_b32 v{vB}, 0")
    nt = 1
    if a.touch:
        cm("first touch of the other small buffers while the address translation misses overlap")
        e(f"    v_mov_b32 v{vA}, s{sT1}")
        e(f"    global_load_dword v{vST}, v{vA}, {sr(sKT,2)}")
        e(f"    global_load_dword v{vST+1}, v{vA}, {sr(sVT,2)}")
        e(f"    global_load_dword v{vST+2}, v{vB}, {sr(sDBG,2)} nt")
        nt += 3
    cm("every eighth workgroup clears the ranking counter of its round")
    e(f"    s_lshr_b32 s{sT2}, s2, 3")
    e(f"    s_mul_i32 s{sT2}, s{sT2}, {a.gstride}")
    if ST_: e(f"    s_add_u32 s{sT2}, s{sT2}, 0x200000")
    e(f"    v_mov_b32 v{vA}, s{sT2}")
    big = 1e9 * math.sqrt(128.0)
    e(f"    s_mov_b32 s{sT2}, {f32bits(big):#x}               ; 1e9 / D^-0.5")
    for i in range(4): e(f"    v_mov_b32 v{vBI+4+i}, 0xff800000")
    if not a.qsplit: e(f"    s_waitcnt vmcnt({nt})")
    if not (a.qsplit and a.tbar): e("    s_barrier")
    e("    s_and_b32 s60, s2, 7")
    e("    s_cbranch_scc1 L_noclr")
    e(f"    global_store_dword v{vA}, v{vB}, {sr(sWS,2)} sc0 sc1")
    e("L_noclr:")
    e("    s_waitcnt vmcnt(0)")
    e(f"    v_lshlrev_b32 v{vBI}, 16, v{vP}")
    e(f"    v_and_b32 v{vBI+1}, 0xffff0000, v{vP}")
    e(f"    v_lshlrev_b32 v{vBI+2}, 16, v{vP+1}")
    e(f"    v_and_b32 v{vBI+3}, 0xffff0000, v{vP+1}")
    e(f"    s_add_u32 m0, s{sLW}, {ORD[0]*SL - 1024*ORD[0]}")
    for i in range(4): e(f"    v_fma_f32 v{vBI+i}, v{vBI+i}, s{sT2}, -s{sT2}")
    e("    s_branch L_go")

    if a.late == 2:
        e("; ---- set-up that is only needed from the phase boundary on; run once, in an idle slot of the first iteration")
        e("L_once:")
        late_setup()
        e("    s_branch L_onceb")
    for n in stubs:
        e(f"L_gr{n}:")
        e(f"    s_mov_b32 s{sN}, 1")
        e(f"    s_atomic_add s{sN}, {sr(sWS,2)}, 0x0 glc")
        e(f"    v_lshl_add_u32 v{vA}, v{vLN}, 6, 32")
        e("    s_waitcnt lgkmcnt(0)")
        e(f"    s_min_u32 s{sN}, s{sN}, 7")
        e(f"    s_mul_i32 s{sN}, s{sN}, {a.gk}")
        e(f"    s_sub_u32 s{sN}, {a.th + (7*a.gk + 1)//2}, s{sN}")
        e(f"    s_xor_b32 s{sN}, s{sN}, {a.th}")
        e(f"    v_mov_b32 v{vB}, s{sN}")
        e(f"    buffer_store_byte v{vB}, v{vA}, {sr(SRD_D,4)}, 0 offen")
        e(f"    s_branch L_grb{n}")
    e('.section .rodata,"a"')
    e(".p2align 6")
    e(f".amdhsa_kernel {NAME}_kernel")
    e(f"  .amdhsa_next_free_vgpr {NV}")
    e(f"  .amdhsa_next_free_sgpr {76 if ST_ else 64}")
    e(f"  .amdhsa_accum_offset {NV}")
    e("  .amdhsa_group_segment_fixed_size 0")
    e("  .amdhsa_kernarg_size 72")
    e("  .amdhsa_user_sgpr_count 2")
    e("  .amdhsa_user_sgpr_kernarg_segment_ptr 1")
    e("  .amdhsa_system_sgpr_workgroup_id_x 1")
    e(".end_amdhsa_kernel")
    return "\n".join(L) + "\n"

def parser():
    ap = argparse.ArgumentParser()
    ap.add_argument("--r", type=int, default=5)
    ap.add_argument("--r2", type=int, default=6)
    ap.add_argument("--th", type=int, default=20)
    ap.add_argument("--gp", type=int, default=3)
    ap.add_argument("--g0", type=int, default=4)
    ap.add_argument("--gn", type=int, default=19)
    ap.add_argument("--gk", type=int, default=3)
    ap.add_argument("--gstride", type=int, default=4352)
    ap.add_argument("--wsh", type=int, default=13)
    ap.add_argument("--t1off", type=int, default=4096)
    ap.add_argument("--ord", type=int, default=0)
    ap.add_argument("--hx", type=int, default=4)
    ap.add_argument("--hm", type=int, default=7)
    ap.add_argument("--hp", type=lambda x: [int(y) for y in x.split(",")], default=[])
    ap.add_argument("--ix", type=int, default=0)
    ap.add_argument("--ixs", type=int, default=3)
    ap.add_argument("--ixl", type=int, default=0)
    ap.add_argument("--fast", type=int, default=1)
    ap.add_argument("--legacy", type=int, default=1)
    ap.add_argument("--touch", type=int, default=0)
    ap.add_argument("--late", type=int, default=2)
    ap.add_argument("--qsplit", type=int, default=1)
    ap.add_argument("--qpos", type=int, default=2)
    ap.add_argument("--tbar", type=int, default=0)
    ap.add_argument("--stamp", type=int, default=0)
    ap.add_argument("-o", default="/dev/stdout")
    return ap
if __name__ == "__main__":
    a = parser().parse_args()
    open(a.o, "w").write(gen(a))
```
